```python
import torch

def _softmax(x, axis=-1):
    return torch.softmax(x, dim=axis)
def _gelu(x):
    return torch.nn.functional.gelu(x, approximate="tanh")
def _silu(x):
    return torch.nn.functional.silu(x)
def _sigmoid(x):
    return torch.sigmoid(x)
def _layernorm(x, axis=-1, eps=1e-5):
    m = x.mean(dim=axis, keepdim=True)
    v = x.var(dim=axis, keepdim=True, unbiased=False)
    return (x - m) / torch.sqrt(v + eps)
def _scatter_add(tgt, idx, src, axis=0):
    return tgt.clone().index_add_(axis, idx, src)
def _segment_sum(src, seg, n):
    out = torch.zeros((n,) + src.shape[1:], dtype=src.dtype)
    return out.index_add_(0, seg, src)
def _pad(x, pw):
    flat = tuple(v for pair in reversed(pw) for v in pair)
    return torch.nn.functional.pad(x, flat)

kernel_name = 'standalone__sliding_block_cached__decode'

def setup_inputs():

    _w = (lambda a: (lambda t: t.to(torch.bfloat16) if t.is_floating_point() else t)(torch.as_tensor(a)))
    B, Sq, D = 1, 1, 448
    Hq, Hkv, Sk, Dh = 16, 8, 65536, 256
    assert Hq % Hkv == 0, (Hq, Hkv)
    return {
        "x": _w((lambda *s: torch.randn(*s, dtype=torch.bfloat16) * 0.8)(B, Sq, D)),
        "k_cache": _w((lambda *s: torch.randn(*s, dtype=torch.bfloat16) * 0.8)(B, Hkv, Sk, Dh)),
        "v_cache": _w((lambda *s: torch.randn(*s, dtype=torch.bfloat16) * 0.05)(B, Hkv, Sk, Dh)),
        "wq": _w((lambda *s: torch.randn(*s, dtype=torch.bfloat16) * 0.8)(D, Hq * Dh) * (D ** -0.5)),
        "wo": _w((lambda *s: torch.randn(*s, dtype=torch.bfloat16) * 0.05)(Hq * Dh, D) * ((Hq * Dh) ** -0.5)),
    }

def reference(x, k_cache, v_cache, wq, wo):
    B, Sq, D = x.shape
    Hq, Dh = 16, 256
    Hkv, Sk = k_cache.shape[1], k_cache.shape[2]
    W = min(4096, max(256, Sk // 4))
    rep = Hq // Hkv
    q = (lambda x, *d: x.permute(*d))((x @ wq).reshape(B, Sq, Hq, Dh), 0, 2, 1, 3)
    k = (lambda x, n, axis: torch.repeat_interleave(x, n, dim=axis))(k_cache[:, :, Sk - W:, :], rep, axis=1)
    v = (lambda x, n, axis: torch.repeat_interleave(x, n, dim=axis))(v_cache[:, :, Sk - W:, :], rep, axis=1)
    scores = torch.einsum("bhqd,bhkd->bhqk", q, k) * (Dh ** -0.5)
    p = _softmax(scores, axis=-1)
    o = torch.einsum("bhqk,bhkd->bhqd", p, v)
    return (lambda x, *d: x.permute(*d))(o, 0, 2, 1, 3).reshape(B, Sq, Hq * Dh) @ wo
```

```python
KN = "standalone__sliding_block_cached__decode_kernel"
HEADER = """; Kernarg layout for this problem (64 bytes, ptrs only, base s[0:1]):
; @launch grid=({grid},1,1) block=({block},1,1) lds={lds}
.amdgcn_target "amdgcn-amd-amdhsa--gfx950"
.text
.globl {kn}
.p2align 8
.type {kn},@function
{kn}:
"""
FOOTER = """
.section .rodata,"a"
.p2align 6
.amdhsa_kernel {kn}
  .amdhsa_next_free_vgpr {vgpr}
  .amdhsa_next_free_sgpr {sgpr}
  .amdhsa_accum_offset {accum}
  .amdhsa_group_segment_fixed_size 0
  .amdhsa_kernarg_size 64
  .amdhsa_user_sgpr_count 2
  .amdhsa_user_sgpr_kernarg_segment_ptr 1
  .amdhsa_system_sgpr_workgroup_id_x 1
  .amdhsa_float_denorm_mode_32 3
.end_amdhsa_kernel
"""
class Asm:
    def __init__(self):
        self.l = []
    def __call__(self, s=""):
        for line in s.split("\n"):
            line = line.rstrip()
            if line.strip():
                self.l.append(line if line.strip().endswith(":") else "    " + line.strip())
    def text(self):
        return "\n".join(self.l) + "\n"
def wrap(body, grid, block, lds, vgpr=256, sgpr=102, accum=None):
    if accum is None:
        accum = min(256, (vgpr + 3) // 4 * 4)
    return HEADER.format(grid=grid, block=block, lds=lds, kn=KN) + body + FOOTER.format(kn=KN, vgpr=vgpr, sgpr=sgpr, accum=accum)
```

```python
def stamp(a, k):
    a(f"s_memrealtime s[{64+2*k}:{65+2*k}]")
def dump(a, nst, waves, wave_sreg="s3", wg_sreg="s2", ws_srd=36, vt=(200,), label="L_end"):
    v = vt[0]
    a("s_waitcnt lgkmcnt(0)")
    a(f"s_mul_i32 s62, {wg_sreg}, {waves}")
    a(f"s_add_u32 s62, s62, {wave_sreg}")
    a("s_lshl_b32 s62, s62, 7")
    a("s_add_u32 s62, s62, 0x20000000")
    a(f"v_mov_b32 v{v}, 0")
    a("s_mov_b64 exec, 1")
    for k in range(0, nst, 2):
        a(f"v_mov_b32 v{v+4}, s{64+2*k}")
        a(f"v_mov_b32 v{v+5}, s{65+2*k}")
        if k + 1 < nst:
            a(f"v_mov_b32 v{v+6}, s{66+2*k}")
            a(f"v_mov_b32 v{v+7}, s{67+2*k}")
            a(f"buffer_store_dwordx4 v[{v+4}:{v+7}], v{v}, s[{ws_srd}:{ws_srd+3}], s62 offen offset:{8*k}")
        else:
            a(f"buffer_store_dwordx2 v[{v+4}:{v+5}], v{v}, s[{ws_srd}:{ws_srd+3}], s62 offen offset:{8*k}")
        a("s_nop 1")
```

```python
import sys
from common import *

KL, VL, WL = 0, 65536, 131072
QL = 147456
PL = QL + 1024
SL = PL + 1024
OL = SL + 64
FL = OL + 128
LDS_BYTES = 150528
F_Q, F_P, F_V, F_H, F_D, F_K = 0, 4, 8, 12, 16, 20
WS_EP, WS_QG, WS_ST, WS_HA, WS_HB, WS_SIZE = 0, 0x1000, 0x30000, 0x40000, 0xC0000, 0x100000
SCALE_LOG2E = 0x3DB8AA3B
SPIN_LDS = 1 << 16
SPIN_MEM = 1 << 14

sB, sWAVE = 2, 3
sG, sC, sW, sTAG = 20, 21, 22, 23
sT0, sT1, sT2, sT3 = 24, 25, 26, 27
WS, RA, RB, RC, RO = 28, 32, 36, 40, 44
sCNT, sVAL = 48, 49
sM1, sM2, sM3 = 50, 52, 54
sROTK, sROTV = 56, 57
sX0, sX1, sX2, sX3 = 58, 59, 60, 61
sEX = 62


class G(Asm):
    def __init__(self, stamps=False):
        super().__init__()
        self.n = 0
        self.stamps = stamps

    def lab(self, base):
        self.n += 1
        return f"L_{base}_{self.n}"

    def stamp(self, k):
        if self.stamps:
            self(f"s_memrealtime s[{64+2*k}:{65+2*k}]")

    def srd(self, r, lo, hi, nrec):
        self(f"s_mov_b32 s{r}, s{lo}")
        self(f"s_and_b32 s{r+1}, s{hi}, 0xffff")
        self(f"s_mov_b32 s{r+2}, {nrec}")
        self(f"s_mov_b32 s{r+3}, 0x20000")

    def exec_all(self):
        self("s_mov_b64 exec, -1")

    def exec_pat(self, lo, hi=None):
        hi = lo if hi is None else hi
        self(f"s_mov_b32 exec_lo, {lo:#x}")
        self(f"s_mov_b32 exec_hi, {hi:#x}")

    def signal(self, vaddr, off, vone):
        self("s_mov_b64 exec, 1")
        self(f"ds_add_u32 v{vaddr}, v{vone} offset:{off}")
        self.exec_all()

    def spin_lds(self, vaddr, off, target, vt):
        L, D = self.lab("spin"), self.lab("spun")
        self(f"s_mov_b32 s{sCNT}, 0")
        self(f"{L}:")
        self(f"ds_read_b32 v{vt}, v{vaddr} offset:{off}")
        self("s_waitcnt lgkmcnt(0)")
        self(f"v_readfirstlane_b32 s{sVAL}, v{vt}")
        self(f"s_cmp_ge_u32 s{sVAL}, {target}")
        self(f"s_cbranch_scc1 {D}")
        self(f"s_add_u32 s{sCNT}, s{sCNT}, 1")
        self(f"s_cmp_lt_u32 s{sCNT}, {SPIN_LDS}")
        self("s_sleep 1")
        self(f"s_cbranch_scc1 {L}")
        self(f"{D}:")

    def tr_addrs(self, dst, base_sexpr, vl, t0, t1, t2):
        self(f"v_lshrrev_b32 v{t0}, 2, v{vl}")
        self(f"v_and_b32 v{t1}, 7, v{t0}")
        self(f"v_lshrrev_b32 v{t0}, 5, v{vl}")
        self(f"v_lshlrev_b32 v{t0}, 10, v{t0}")
        self(f"v_lshlrev_b32 v{t2}, 7, v{t1}")
        self(f"v_add_u32 v{t0}, v{t0}, v{t2}")
        self(f"v_and_b32 v{t2}, 1, v{vl}")
        self(f"v_lshlrev_b32 v{t2}, 3, v{t2}")
        self(f"v_add_u32 v{t0}, v{t0}, v{t2}")
        self(f"v_add_u32 v{t0}, {base_sexpr}, v{t0}")
        self(f"v_and_b32 v{t1}, 6, v{t1}")
        self(f"v_bfe_u32 v{t2}, v{vl}, 1, 1")
        self(f"v_or_b32 v{t1}, v{t1}, v{t2}")
        for t in range(4):
            self(f"v_xor_b32 v{t2}, {2*t}, v{t1}")
            self(f"v_lshlrev_b32 v{t2}, 4, v{t2}")
            self(f"v_add_u32 v{dst+t}, v{t0}, v{t2}")


def gen(depth=8, stamps=False, trig=8, rotk="2*c+4*w", rotv="c+4*w", prio_s=2, nt="nt"):
    a = G(stamps)
    NT = (" " + nt) if nt else ""
    vL = 1
    a(f"""
    s_cmp_ge_u32 s{sB}, 256
    s_cbranch_scc1 L_end
    s_load_dwordx16 s[4:19], s[0:1], 0
    """)
    a.stamp(0)
    if stamps:
        for r in range(66, 96):
            a(f"s_mov_b32 s{r}, 0")
    a(f"""
    v_lshrrev_b32 v2, 6, v0
    v_and_b32 v{vL}, 63, v0
    v_readfirstlane_b32 s{sWAVE}, v2
    s_and_b32 s{sG}, s{sB}, 7
    s_lshr_b32 s{sC}, s{sB}, 3
    s_and_b32 s{sW}, s{sWAVE}, 3
    s_cmp_ge_u32 s{sWAVE}, 4
    s_cbranch_scc1 L_loader
    """)

    def rot(expr, dst):
        terms = expr.split("+")
        first = True
        for t in terms:
            if "*" in t:
                k, v = t.split("*")
            else:
                k, v = "1", t
            src = {"c": sC, "w": sW, "g": sG}[v]
            a(f"s_mul_i32 s{sT0}, s{src}, {k}")
            if first:
                a(f"s_mov_b32 s{dst}, s{sT0}"); first = False
            else:
                a(f"s_add_u32 s{dst}, s{dst}, s{sT0}")
        a(f"s_and_b32 s{dst}, s{dst}, 15")

    if prio_s:
        a(f"s_setprio {prio_s}")
    vKG, vJ, vFL, vONE = 2, 3, 4, 5
    vA0, vT0, vT1, vT2 = 6, 7, 8, 9
    vTR = 10
    vX = 16
    vBF = 32
    vACC = 96
    vPO = 112
    a(f"""
    v_lshrrev_b32 v{vKG}, 4, v{vL}
    v_and_b32 v{vJ}, 15, v{vL}
    v_mov_b32 v{vFL}, {FL}
    v_mov_b32 v{vONE}, 1
    s_cmp_lg_u32 s{sW}, 0
    s_cbranch_scc1 L_s_notq
    """)
    a(f"""
    v_lshrrev_b32 v{vT0}, 3, v{vL}
    v_and_b32 v{vT1}, 6, v{vT0}
    v_and_b32 v{vT2}, 7, v{vL}
    v_xor_b32 v{vT1}, v{vT1}, v{vT2}
    v_lshlrev_b32 v{vT1}, 4, v{vT1}
    v_lshlrev_b32 v{vT0}, 13, v{vT0}
    v_add_u32 v{vA0}, v{vT0}, v{vT1}
    s_lshr_b32 s{sX0}, s{sC}, 3
    s_and_b32 s{sX1}, s{sC}, 7
    s_mul_i32 s{sT0}, s{sX0}, {112*8192}
    s_lshl_b32 s{sT1}, s{sG}, 10
    s_add_u32 s{sT0}, s{sT0}, s{sT1}
    s_lshl_b32 s{sT1}, s{sX1}, 7
    s_add_u32 s{sT0}, s{sT0}, s{sT1}
    s_mul_i32 s{sT2}, s{sX0}, 224
    v_lshlrev_b32 v{vT2}, 3, v{vKG}
    v_add_u32 v{vT2}, s{sT2}, v{vT2}
    s_mov_b32 m0, {WL}
    s_mov_b32 s{sT3}, 0
    s_waitcnt lgkmcnt(0)
    s_add_u32 s{RA}, s10, s{sT0}
    s_addc_u32 s{RA+1}, s11, 0
    s_and_b32 s{RA+1}, s{RA+1}, 0xffff
    s_mov_b32 s{RA+2}, {111*8192+128}
    s_mov_b32 s{RA+3}, 0x20000
    """)
    for ii in range(14):
        a(f"buffer_load_dwordx4 v{vA0}, s[{RA}:{RA+3}], s{sT3} offen{NT} lds")
        if ii < 13:
            a(f"s_add_u32 m0, m0, 1024")
            a(f"s_add_u32 s{sT3}, s{sT3}, 65536")
    a.srd(RB, 4, 5, 896)
    for jj in range(7):
        a(f"buffer_load_dwordx2 v[{vX+2*jj}:{vX+2*jj+1}], v{vT2}, s[{RB}:{RB+3}], 0 offen offset:{32*jj}")
    a(f"s_load_dword s{sTAG}, s[18:19], {WS_EP}")
    a.srd(WS, 18, 19, WS_SIZE)
    for r in range(4):
        a(f"v_mov_b32 v{vPO+r}, -1")
    a(f"""
    v_lshrrev_b32 v{vT0}, 2, v{vL}
    v_and_b32 v{vT1}, 3, v{vL}
    v_lshlrev_b32 v{vT1}, 4, v{vT1}
    v_lshlrev_b32 v{vA0}, 11, v{vT0}
    v_add_u32 v{vA0}, v{vA0}, v{vT1}
    s_lshl_b32 s{sT0}, s{sG}, 16
    s_lshl_b32 s{sT1}, s{sC}, 6
    s_add_u32 s{sT0}, s{sT0}, s{sT1}
    s_add_u32 s{sT0}, s{sT0}, {WS_HA}
    s_add_u32 s{sT1}, s{sT0}, 32768
    buffer_store_dwordx4 v[{vPO}:{vPO+3}], v{vA0}, s[{WS}:{WS+3}], s{sT0} offen sc1
    buffer_store_dwordx4 v[{vPO}:{vPO+3}], v{vA0}, s[{WS}:{WS+3}], s{sT1} offen sc1
    v_lshlrev_b32 v{vT0}, 12, v{vT0}
    v_add_u32 v{vT0}, v{vT0}, v{vT1}
    s_and_b32 s{sT2}, s{sC}, 3
    s_lshl_b32 s{sT0}, s{sT2}, 15
    s_lshr_b32 s{sT1}, s{sC}, 2
    s_lshl_b32 s{sT3}, s{sG}, 3
    s_add_u32 s{sT1}, s{sT1}, s{sT3}
    s_lshl_b32 s{sT1}, s{sT1}, 6
    s_add_u32 s{sT0}, s{sT0}, s{sT1}
    s_add_u32 s{sT0}, s{sT0}, {WS_HB}
    s_cmp_eq_u32 s{sT2}, 3
    s_cselect_b32 exec_lo, 0xffff, -1
    s_mov_b32 exec_hi, 0
    buffer_store_dwordx4 v[{vPO}:{vPO+3}], v{vT0}, s[{WS}:{WS+3}], s{sT0} offen sc1
    s_mov_b64 exec, 3
    v_lshlrev_b32 v{vT1}, 8, v{vL}
    s_lshl_b32 s{sT0}, s{sG}, 9
    s_lshl_b32 s{sT1}, s{sC}, 3
    s_add_u32 s{sT0}, s{sT0}, s{sT1}
    s_add_u32 s{sT0}, s{sT0}, {WS_ST}
    buffer_store_dwordx2 v[{vPO}:{vPO+1}], v{vT1}, s[{WS}:{WS+3}], s{sT0} offen sc1
    s_mov_b64 exec, -1
    s_barrier
    """)
    a.stamp(1)
    a(f"s_mov_b32 s{sT3}, {WL}")
    a.tr_addrs(vTR, f"s{sT3}", vL, vT0, vT1, vT2)
    for r in (vX + 14, vX + 15):
        a(f"v_mov_b32 v{r}, 0")
    for t in range(4):
        a(f"v_mov_b32 v{vBF+16*t+14}, 0")
        a(f"v_mov_b32 v{vBF+16*t+15}, 0")
    a("s_waitcnt vmcnt(4)")
    a.stamp(2)

    def q_reads(t):
        for jj in range(7):
            a(f"ds_read_b64_tr_b16 v[{vBF+16*t+2*jj}:{vBF+16*t+2*jj+1}], v{vTR+t} offset:{2048*jj}")

    def q_mfma(t):
        for J in range(4):
            c = "0" if J == 0 else f"v[{vACC+4*t}:{vACC+4*t+3}]"
            a(f"v_mfma_f32_16x16x32_bf16 v[{vACC+4*t}:{vACC+4*t+3}], v[{vX+4*J}:{vX+4*J+3}], v[{vBF+16*t+4*J}:{vBF+16*t+4*J+3}], {c}")
    q_reads(0); q_reads(1)
    a("s_waitcnt lgkmcnt(7)"); q_mfma(0)
    q_reads(2)
    a("s_waitcnt lgkmcnt(7)"); q_mfma(1)
    q_reads(3)
    a("s_waitcnt lgkmcnt(7)"); q_mfma(2)
    a("s_waitcnt lgkmcnt(0)"); q_mfma(3)
    a(f"""
    s_mov_b32 s{sM1}, 0xffff0000
    s_mov_b32 s{sM1+1}, 0
    s_mov_b32 s{sM2}, 0
    s_mov_b32 s{sM2+1}, 0xffff
    s_mov_b32 s{sM3}, 0
    s_mov_b32 s{sM3+1}, 0xffff0000
    s_mul_i32 s{sTAG}, s{sTAG}, 0x9E3779B1
    s_add_u32 s{sTAG}, s{sTAG}, 0x7F4A7C15
    s_lshl_b32 s{sT0}, s{sG}, 14
    s_lshl_b32 s{sT1}, s{sX0}, 12
    s_add_u32 s{sT0}, s{sT0}, s{sT1}
    s_lshl_b32 s{sT1}, s{sX1}, 9
    s_add_u32 s{sT0}, s{sT0}, s{sT1}
    s_add_u32 s{sT0}, s{sT0}, {WS_QG}
    v_lshlrev_b32 v{vA0}, 3, v{vL}
    s_nop 4
    """)
    a(f"""
    v_cndmask_b32 v8, v{vACC}, v{vACC+4}, s[{sM1}:{sM1+1}]
    v_cndmask_b32 v8, v8, v{vACC+8}, s[{sM2}:{sM2+1}]
    v_cndmask_b32 v8, v8, v{vACC+12}, s[{sM3}:{sM3+1}]
    v_mov_b32 v9, s{sTAG}
    s_waitcnt vmcnt(0)
    buffer_store_dwordx2 v[8:9], v{vA0}, s[{WS}:{WS+3}], s{sT0} offen sc1
    """)
    a.stamp(3)
    a("s_branch L_s_common")
    a("L_s_notq:")
    a(f"""
    s_cmp_lg_u32 s{sW}, 1
    s_cbranch_scc1 L_s_noinit
    v_lshlrev_b32 v{vT0}, 2, v{vL}
    v_add_u32 v{vT0}, {FL}, v{vT0}
    v_mov_b32 v{vT1}, 0
    s_mov_b64 exec, 0xffff
    ds_write_b32 v{vT0}, v{vT1}
    s_mov_b64 exec, -1
    L_s_noinit:
    s_waitcnt lgkmcnt(0)
    s_load_dword s{sTAG}, s[18:19], {WS_EP}
    """)
    a.srd(WS, 18, 19, WS_SIZE)
    a(f"""
    s_waitcnt lgkmcnt(0)
    s_mul_i32 s{sTAG}, s{sTAG}, 0x9E3779B1
    s_add_u32 s{sTAG}, s{sTAG}, 0x7F4A7C15
    s_barrier
    """)
    a.stamp(1)
    a("L_s_common:")
    vG = 16
    vEV = 32
    vGA, vEA = 10, 11
    rot(rotk, sROTK)
    a(f"s_and_b32 s{sROTK}, s{sROTK}, 14")
    a(f"""
    v_lshlrev_b32 v{vGA}, 4, v{vL}
    s_lshl_b32 s{sX0}, s{sG}, 14
    s_lshl_b32 s{sT0}, s{sW}, 10
    s_add_u32 s{sX0}, s{sX0}, s{sT0}
    s_add_u32 s{sX0}, s{sX0}, {WS_QG}
    s_add_u32 s{sX1}, s{sX0}, 4096
    s_add_u32 s{sX2}, s{sX0}, 8192
    s_add_u32 s{sX3}, s{sX0}, 12288
    """)
    a(f"""
    s_lshr_b32 s{sT0}, s{sB}, 3
    v_and_b32 v{vT0}, 7, v{vL}
    v_lshlrev_b32 v{vT0}, 2, v{vT0}
    v_add_u32 v{vT0}, s{sT0}, v{vT0}
    v_lshrrev_b32 v{vT1}, 3, v{vT0}
    v_lshlrev_b32 v{vT1}, 12, v{vT1}
    v_and_b32 v{vT0}, 7, v{vT0}
    v_lshlrev_b32 v{vT0}, 9, v{vT0}
    v_add_u32 v{vT0}, v{vT0}, v{vT1}
    v_lshrrev_b32 v{vT1}, 3, v{vL}
    v_lshlrev_b32 v{vT1}, 14, v{vT1}
    v_add_u32 v{vT0}, v{vT0}, v{vT1}
    v_add_u32 v{vEA}, {WS_QG}, v{vT0}
    s_cmp_lt_u32 s{sB}, 28
    s_cselect_b32 s{sT0}, 1, 0
    s_cmp_eq_u32 s{sW}, 3
    s_cselect_b32 s{sT1}, s{sT0}, 0
    s_mov_b32 s63, s{sT1}
    """)
    if trig:
        a.spin_lds(vFL, F_H, 4, vT0)
    a.stamp(4)
    LQ, LQD, LQN = a.lab("qg"), a.lab("qgd"), a.lab("qgn")
    a(f"s_mov_b32 s{sCNT}, 0")
    a(f"{LQ}:")
    for r in range(4):
        a(f"buffer_load_dwordx4 v[{vG+4*r}:{vG+4*r+3}], v{vGA}, s[{WS}:{WS+3}], s{sX0+r} offen sc1")
    a(f"""
    v_mov_b32 v{vEV+1}, s{sTAG}
    s_cmp_eq_u32 s63, 0
    s_cbranch_scc1 {LQN}
    buffer_load_dwordx2 v[{vEV}:{vEV+1}], v{vEA}, s[{WS}:{WS+3}], 0 offen sc1
    {LQN}:
    s_waitcnt vmcnt(0)
    v_max3_u32 v{vT0}, v{vG+1}, v{vG+3}, v{vG+5}
    v_min3_u32 v{vT1}, v{vG+1}, v{vG+3}, v{vG+5}
    v_max3_u32 v{vT0}, v{vT0}, v{vG+7}, v{vG+9}
    v_min3_u32 v{vT1}, v{vT1}, v{vG+7}, v{vG+9}
    v_max3_u32 v{vT0}, v{vT0}, v{vG+11}, v{vG+13}
    v_min3_u32 v{vT1}, v{vT1}, v{vG+11}, v{vG+13}
    v_max3_u32 v{vT0}, v{vT0}, v{vG+15}, v{vEV+1}
    v_min3_u32 v{vT1}, v{vT1}, v{vG+15}, v{vEV+1}
    v_xor_b32 v{vT0}, s{sTAG}, v{vT0}
    v_xor_b32 v{vT1}, s{sTAG}, v{vT1}
    v_or_b32 v{vT0}, v{vT0}, v{vT1}
    v_cmp_ne_u32 vcc, 0, v{vT0}
    s_cbranch_vccz {LQD}
    s_add_u32 s{sCNT}, s{sCNT}, 1
    s_cmp_lt_u32 s{sCNT}, {SPIN_MEM}
    s_cbranch_scc1 {LQ}
    {LQD}:
    v_add_f32 v{vG}, v{vG}, v{vG+4}
    v_add_f32 v{vG+2}, v{vG+2}, v{vG+6}
    v_add_f32 v{vG+8}, v{vG+8}, v{vG+12}
    v_add_f32 v{vG+10}, v{vG+10}, v{vG+14}
    v_add_f32 v{vG}, v{vG}, v{vG+8}
    v_add_f32 v{vG+2}, v{vG+2}, v{vG+10}
    v_cvt_pk_bf16_f32 v{vT0}, v{vG}, v{vG+2}
    v_lshlrev_b32 v{vT1}, 2, v{vL}
    s_lshl_b32 s{sT0}, s{sW}, 8
    s_add_u32 s{sT0}, s{sT0}, {QL}
    v_add_u32 v{vT1}, s{sT0}, v{vT1}
    ds_write_b32 v{vT1}, v{vT0}
    """)
    a.signal(vFL, F_Q, vONE)
    a.stamp(5)
    vQ = 16
    vK = 48
    vKA = 112
    vD = 120
    vS = 128
    vP = 136
    a(f"""
    v_and_b32 v{vT0}, 1, v{vJ}
    v_lshlrev_b32 v{vT0}, 9, v{vT0}
    v_lshlrev_b32 v{vT1}, 4, v{vKG}
    v_add_u32 v{vT0}, v{vT0}, v{vT1}
    v_add_u32 v{vA0}, {QL}, v{vT0}
    v_xor_b32 v{vT0}, v{vKG}, v{vJ}
    v_lshlrev_b32 v{vT0}, 4, v{vT0}
    v_lshlrev_b32 v{vT1}, 9, v{vJ}
    s_lshl_b32 s{sT0}, s{sW}, 14
    v_add_u32 v{vT1}, s{sT0}, v{vT1}
    """)
    for J in range(8):
        a(f"v_xor_b32 v{vT2}, {J<<6}, v{vT0}")
        a(f"v_add_u32 v{vKA+J}, v{vT1}, v{vT2}")
    a.spin_lds(vFL, F_Q, 4, vT2)
    for J in range(8):
        a(f"ds_read_b128 v[{vQ+4*J}:{vQ+4*J+3}], v{vA0} offset:{64*J}")
    a(f"v_mov_b32 v{vT0}, s{sW}")
    a(f"v_lshlrev_b32 v{vT0}, 2, v{vT0}")
    a(f"v_add_u32 v{vT0}, v{vFL}, v{vT0}")
    a.spin_lds(vT0, F_K, 1, vT2)
    a.stamp(6)
    for tt in range(2):
        for J in range(8):
            a(f"ds_read_b128 v[{vK+32*tt+4*J}:{vK+32*tt+4*J+3}], v{vKA+J} offset:{KL+8192*tt}")
        if tt == 0:
            continue
    a("s_waitcnt lgkmcnt(8)")
    for J in range(8):
        c = "0" if J == 0 else f"v[{vD}:{vD+3}]"
        a(f"v_mfma_f32_16x16x32_bf16 v[{vD}:{vD+3}], v[{vK+4*J}:{vK+4*J+3}], v[{vQ+4*J}:{vQ+4*J+3}], {c}")
    a("s_waitcnt lgkmcnt(0)")
    for J in range(8):
        c = "0" if J == 0 else f"v[{vD+4}:{vD+7}]"
        a(f"v_mfma_f32_16x16x32_bf16 v[{vD+4}:{vD+7}], v[{vK+32+4*J}:{vK+32+4*J+3}], v[{vQ+4*J}:{vQ+4*J+3}], {c}")
    vPA0, vPA1 = 10, 11
    a(f"""
    v_lshlrev_b32 v{vT0}, 1, v{vKG}
    v_add_u32 v{vT0}, s{sROTK}, v{vT0}
    v_add_u32 v{vT1}, 8, v{vT0}
    v_and_b32 v{vT0}, 15, v{vT0}
    v_and_b32 v{vT1}, 15, v{vT1}
    v_lshlrev_b32 v{vT0}, 3, v{vT0}
    v_lshlrev_b32 v{vT1}, 3, v{vT1}
    v_and_b32 v{vT2}, 1, v{vJ}
    v_lshlrev_b32 v{vT2}, 9, v{vT2}
    s_lshl_b32 s{sT0}, s{sW}, 7
    s_add_u32 s{sT0}, s{sT0}, {PL}
    v_add_u32 v{vT2}, s{sT0}, v{vT2}
    v_add_u32 v{vPA0}, v{vT2}, v{vT0}
    v_add_u32 v{vPA1}, v{vT2}, v{vT1}
    s_mov_b32 s{sT1}, 0xffff0000
    s_mov_b32 s{sT2}, {SCALE_LOG2E:#x}
    s_nop 1
    """)
    for e in range(4):
        a(f"v_cvt_pk_bf16_f32 v{vP+e}, v{vD+2*e}, v{vD+2*e+1}")
    for e in range(4):
        a(f"v_lshlrev_b32 v{vS+2*e}, 16, v{vP+e}")
        a(f"v_and_b32 v{vS+2*e+1}, s{sT1}, v{vP+e}")
    vMX, vSUM = 12, 13
    a(f"""
    v_max3_f32 v{vMX}, v{vS}, v{vS+1}, v{vS+2}
    v_max3_f32 v{vMX}, v{vMX}, v{vS+3}, v{vS+4}
    v_max3_f32 v{vMX}, v{vMX}, v{vS+5}, v{vS+6}
    v_max_f32 v{vMX}, v{vMX}, v{vS+7}
    v_mov_b32 v{vT0}, v{vMX}
    s_nop 1
    v_permlane16_swap_b32 v{vMX}, v{vT0}
    v_max_f32 v{vMX}, v{vMX}, v{vT0}
    v_mov_b32 v{vT0}, v{vMX}
    s_nop 1
    v_permlane32_swap_b32 v{vMX}, v{vT0}
    v_max_f32 v{vMX}, v{vMX}, v{vT0}
    v_mul_f32 v{vMX}, s{sT2}, v{vMX}
    """)
    for e in range(8):
        a(f"v_fma_f32 v{vP+e}, v{vS+e}, s{sT2}, -v{vMX}")
    for e in range(8):
        a(f"v_exp_f32 v{vP+e}, v{vP+e}")
    a(f"""
    s_nop 0
    v_add_f32 v{vT0}, v{vP}, v{vP+1}
    v_add_f32 v{vT1}, v{vP+2}, v{vP+3}
    v_add_f32 v{vT2}, v{vP+4}, v{vP+5}
    v_add_f32 v{vSUM}, v{vP+6}, v{vP+7}
    v_add_f32 v{vT0}, v{vT0}, v{vT1}
    v_add_f32 v{vSUM}, v{vSUM}, v{vT2}
    v_add_f32 v{vSUM}, v{vSUM}, v{vT0}
    """)
    a.exec_pat(0x00030003)
    a(f"ds_write_b128 v{vPA0}, v[{vP}:{vP+3}]")
    a(f"ds_write_b128 v{vPA1}, v[{vP+4}:{vP+7}]")
    a.exec_all()
    a(f"""
    v_mov_b32 v{vT0}, v{vSUM}
    s_nop 1
    v_permlane16_swap_b32 v{vSUM}, v{vT0}
    v_add_f32 v{vSUM}, v{vSUM}, v{vT0}
    v_mov_b32 v{vT0}, v{vSUM}
    s_nop 1
    v_permlane32_swap_b32 v{vSUM}, v{vT0}
    v_add_f32 v{vSUM}, v{vSUM}, v{vT0}
    v_lshlrev_b32 v{vT0}, 3, v{vL}
    s_lshl_b32 s{sT0}, s{sW}, 4
    s_add_u32 s{sT0}, s{sT0}, {SL}
    v_add_u32 v{vT0}, s{sT0}, v{vT0}
    s_mov_b64 exec, 3
    ds_write_b64 v{vT0}, v[{vMX}:{vMX+1}]
    s_mov_b64 exec, -1
    """)
    a.signal(vFL, F_P, vONE)
    a.stamp(7)
    LNS = a.lab("nostat")
    a(f"s_cmp_lg_u32 s{sW}, 0")
    a(f"s_cbranch_scc1 {LNS}")
    a.spin_lds(vFL, F_P, 4, vT2)
    a(f"""
    v_and_b32 v{vT0}, 1, v{vL}
    v_lshlrev_b32 v{vT0}, 3, v{vT0}
    v_add_u32 v{vT0}, {SL}, v{vT0}
    ds_read_b64 v[16:17], v{vT0}
    ds_read_b64 v[18:19], v{vT0} offset:16
    ds_read_b64 v[20:21], v{vT0} offset:32
    ds_read_b64 v[22:23], v{vT0} offset:48
    s_waitcnt lgkmcnt(0)
    v_max3_f32 v24, v16, v18, v20
    v_max_f32 v24, v24, v22
    v_sub_f32 v16, v16, v24
    v_sub_f32 v18, v18, v24
    v_sub_f32 v20, v20, v24
    v_sub_f32 v22, v22, v24
    v_exp_f32 v16, v16
    v_exp_f32 v18, v18
    v_exp_f32 v20, v20
    v_exp_f32 v22, v22
    s_nop 0
    v_mul_f32 v25, v16, v17
    v_fmac_f32 v25, v18, v19
    v_fmac_f32 v25, v20, v21
    v_fmac_f32 v25, v22, v23
    v_lshlrev_b32 v{vT1}, 8, v{vL}
    s_lshl_b32 s{sT0}, s{sG}, 9
    s_lshl_b32 s{sT1}, s{sC}, 3
    s_add_u32 s{sT0}, s{sT0}, s{sT1}
    s_add_u32 s{sT0}, s{sT0}, {WS_ST}
    s_mov_b64 exec, 3
    buffer_store_dwordx2 v[24:25], v{vT1}, s[{WS}:{WS+3}], s{sT0} offen sc1
    s_mov_b64 exec, -1
    {LNS}:
    """)
    vSA, vO0, vO1, vWA0, vWA1, vHA, vOS, vOB, vHB = 10, 11, 14, 15, 16, 17, 18, 19, 20
    vST = 22
    vFA, vFB = 26, 27
    a(f"""
    v_lshrrev_b32 v{vT0}, 2, v{vL}
    v_lshlrev_b32 v{vSA}, 3, v{vT0}
    s_lshl_b32 s{sX0}, s{sG}, 9
    s_lshr_b32 s{sT0}, s{sC}, 4
    s_lshl_b32 s{sT0}, s{sT0}, 8
    s_add_u32 s{sX0}, s{sX0}, s{sT0}
    s_add_u32 s{sX0}, s{sX0}, {WS_ST}
    v_lshlrev_b32 v{vT0}, 1, v{vKG}
    v_xor_b32 v{vT0}, v{vT0}, v{vJ}
    v_lshlrev_b32 v{vT0}, 4, v{vT0}
    v_mul_u32_u24 v{vT1}, 896, v{vKG}
    v_add_u32 v{vO0}, v{vT0}, v{vT1}
    v_xor_b32 v{vT0}, 128, v{vT0}
    v_add_u32 v{vO1}, v{vT0}, v{vT1}
    s_lshl_b32 s{sT0}, s{sG}, 9
    s_lshr_b32 s{sT1}, s{sC}, 2
    s_lshl_b32 s{sT1}, s{sT1}, 6
    s_add_u32 s{sT0}, s{sT0}, s{sT1}
    s_mul_i32 s{sT0}, s{sT0}, 896
    s_and_b32 s{sT1}, s{sC}, 3
    s_lshl_b32 s{sT1}, s{sT1}, 8
    s_add_u32 s{sT0}, s{sT0}, s{sT1}
    s_add_u32 s{RC}, s12, s{sT0}
    s_addc_u32 s{RC+1}, s13, 0
    s_and_b32 s{RC+1}, s{RC+1}, 0xffff
    s_sub_u32 s{RC+2}, 3670016, s{sT0}
    s_mov_b32 s{RC+3}, 0x20000
    """)
    a(f"""
    v_lshrrev_b32 v{vT0}, 2, v{vL}
    v_lshlrev_b32 v{vT1}, 8, v{vT0}
    v_and_b32 v{vT0}, 7, v{vT0}
    v_lshlrev_b32 v{vT0}, 1, v{vT0}
    v_bfe_u32 v{vT2}, v{vL}, 1, 1
    v_xor_b32 v{vT0}, v{vT0}, v{vT2}
    v_and_b32 v{vT2}, 1, v{vL}
    v_lshlrev_b32 v{vT2}, 3, v{vT2}
    v_add_u32 v{vT1}, v{vT1}, v{vT2}
    v_add_u32 v{vT1}, {WL}, v{vT1}
    s_lshl_b32 s{sT0}, s{sW}, 2
    v_xor_b32 v{vT2}, s{sT0}, v{vT0}
    v_lshlrev_b32 v{vT2}, 4, v{vT2}
    v_add_u32 v{vWA0}, v{vT1}, v{vT2}
    s_add_u32 s{sT0}, s{sT0}, 2
    v_xor_b32 v{vT2}, s{sT0}, v{vT0}
    v_lshlrev_b32 v{vT2}, 4, v{vT2}
    v_add_u32 v{vWA1}, v{vT1}, v{vT2}
    v_lshlrev_b32 v{vHA}, 4, v{vL}
    v_and_b32 v{vT0}, 3, v{vL}
    v_lshlrev_b32 v{vT0}, 2, v{vT0}
    v_add_u32 v{vT0}, v{vT0}, v{vKG}
    v_lshlrev_b32 v{vT0}, 1, v{vT0}
    s_lshl_b32 s{sT0}, s{sW}, 5
    s_add_u32 s{sT0}, s{sT0}, {OL}
    v_add_u32 v{vOS}, s{sT0}, v{vT0}
    v_lshlrev_b32 v{vT0}, 3, v{vKG}
    v_add_u32 v{vOB}, {OL}, v{vT0}
    v_and_b32 v{vT0}, 1, v{vJ}
    v_lshlrev_b32 v{vT0}, 12, v{vT0}
    v_lshlrev_b32 v{vT1}, 4, v{vKG}
    v_add_u32 v{vHB}, v{vT0}, v{vT1}
    s_lshl_b32 s{sX1}, s{sG}, 16
    s_lshr_b32 s{sT0}, s{sC}, 2
    s_lshl_b32 s{sT0}, s{sT0}, 2
    s_add_u32 s{sT0}, s{sT0}, s{sW}
    s_lshl_b32 s{sT0}, s{sT0}, 11
    s_add_u32 s{sX1}, s{sX1}, s{sT0}
    s_add_u32 s{sX1}, s{sX1}, {WS_HA}
    s_and_b32 s{sT0}, s{sC}, 3
    s_lshl_b32 s{sT0}, s{sT0}, 3
    s_lshl_b32 s{sT1}, s{sW}, 1
    s_add_u32 s{sX3}, s{sT0}, s{sT1}
    s_lshl_b32 s{sX2}, s{sX3}, 12
    s_lshr_b32 s{sT0}, s{sC}, 2
    s_lshl_b32 s{sT1}, s{sG}, 3
    s_add_u32 s{sT0}, s{sT0}, s{sT1}
    s_lshl_b32 s{sT0}, s{sT0}, 6
    s_add_u32 s{sX2}, s{sX2}, s{sT0}
    s_add_u32 s{sX2}, s{sX2}, {WS_HB}
    """)
    a.spin_lds(vFL, F_V, 4, vT2)
    a.stamp(8)
    def stats_loads():
        a(f"buffer_load_dwordx2 v[{vST}:{vST+1}], v{vSA}, s[{WS}:{WS+3}], s{sX0} offen sc1")
        a(f"buffer_load_dwordx2 v[{vST+2}:{vST+3}], v{vSA}, s[{WS}:{WS+3}], s{sX0} offen offset:128 sc1")
    stats_loads()
    a(f"s_lshl_b32 s{sT0}, s{sW}, 12")
    a(f"s_add_u32 s{sT0}, s{sT0}, {WL}")
    a(f"s_mov_b32 m0, s{sT0}")
    a(f"s_mul_i32 s{sT1}, s{sW}, {16*896}")
    for u in range(4):
        a(f"buffer_load_dwordx4 v{vO1 if u & 1 else vO0}, s[{RC}:{RC+3}], s{sT1} offen{NT} lds")
        if u < 3:
            a("s_add_u32 m0, m0, 1024")
            a(f"s_add_u32 s{sT1}, s{sT1}, {4*896}")
    LS, LSD = a.lab("st"), a.lab("std")
    a(f"s_mov_b32 s{sCNT}, 0")
    a("s_waitcnt vmcnt(4)")
    a(f"{LS}:")
    a(f"""
    v_max3_u32 v{vT0}, v{vST}, v{vST+1}, v{vST+2}
    v_max_u32 v{vT0}, v{vT0}, v{vST+3}
    v_cmp_eq_u32 vcc, -1, v{vT0}
    s_cbranch_vccz {LSD}
    s_add_u32 s{sCNT}, s{sCNT}, 1
    s_cmp_lt_u32 s{sCNT}, {SPIN_MEM}
    s_cbranch_scc0 {LSD}
    """)
    stats_loads()
    a("s_waitcnt vmcnt(0)")
    a(f"s_branch {LS}")
    a(f"{LSD}:")
    a(f"""
    v_max_f32 v{vT0}, v{vST}, v{vST+2}
    s_nop 1
    v_max_f32_dpp v{vT0}, v{vT0}, v{vT0} row_ror:4 row_mask:0xf bank_mask:0xf
    s_nop 1
    v_max_f32_dpp v{vT0}, v{vT0}, v{vT0} row_ror:8 row_mask:0xf bank_mask:0xf
    v_mov_b32 v{vT1}, v{vT0}
    s_nop 1
    v_permlane16_swap_b32 v{vT0}, v{vT1}
    v_max_f32 v{vT0}, v{vT0}, v{vT1}
    v_mov_b32 v{vT1}, v{vT0}
    s_nop 1
    v_permlane32_swap_b32 v{vT0}, v{vT1}
    v_max_f32 v{vT0}, v{vT0}, v{vT1}
    v_sub_f32 v{vFA}, v{vST}, v{vT0}
    v_sub_f32 v{vFB}, v{vST+2}, v{vT0}
    v_exp_f32 v{vFA}, v{vFA}
    v_exp_f32 v{vFB}, v{vFB}
    s_nop 0
    v_mul_f32 v{vT0}, v{vFA}, v{vST+1}
    v_fmac_f32 v{vT0}, v{vFB}, v{vST+3}
    s_nop 1
    v_add_f32_dpp v{vT0}, v{vT0}, v{vT0} row_ror:4 row_mask:0xf bank_mask:0xf
    s_nop 1
    v_add_f32_dpp v{vT0}, v{vT0}, v{vT0} row_ror:8 row_mask:0xf bank_mask:0xf
    v_mov_b32 v{vT1}, v{vT0}
    s_nop 1
    v_permlane16_swap_b32 v{vT0}, v{vT1}
    v_add_f32 v{vT0}, v{vT0}, v{vT1}
    v_mov_b32 v{vT1}, v{vT0}
    s_nop 1
    v_permlane32_swap_b32 v{vT0}, v{vT1}
    v_add_f32 v{vT0}, v{vT0}, v{vT1}
    v_rcp_f32 v{vT0}, v{vT0}
    s_nop 0
    v_mul_f32 v{vFA}, v{vFA}, v{vT0}
    v_mul_f32 v{vFB}, v{vFB}, v{vT0}
    """)
    a.stamp(9)
    a.spin_lds(vFL, F_D, 4, vT2)
    vH = 28
    vWF = 36
    vOF = 52
    vOD = 60

    def ha_loads():
        a(f"buffer_load_dwordx4 v[{vH}:{vH+3}], v{vHA}, s[{WS}:{WS+3}], s{sX1} offen sc1")
        a(f"buffer_load_dwordx4 v[{vH+4}:{vH+7}], v{vHA}, s[{WS}:{WS+3}], s{sX1} offen offset:1024 sc1")
    ha_loads()
    a("s_waitcnt vmcnt(2)")
    a("s_barrier")
    for t, va in ((0, vWA0), (1, vWA1)):
        for J in range(2):
            for hf in range(2):
                r = vWF + 8 * t + 4 * J + 2 * hf
                a(f"ds_read_b64_tr_b16 v[{r}:{r+1}], v{va} offset:{8192*J+4096*hf}")
    LH, LHD = a.lab("ha"), a.lab("had")
    a(f"s_mov_b32 s{sCNT}, 0")
    a(f"{LH}:")
    a(f"""
    s_waitcnt vmcnt(0)
    v_max3_u32 v{vT0}, v{vH}, v{vH+1}, v{vH+2}
    v_max3_u32 v{vT1}, v{vH+3}, v{vH+4}, v{vH+5}
    v_max3_u32 v{vT0}, v{vT0}, v{vH+6}, v{vH+7}
    v_max_u32 v{vT0}, v{vT0}, v{vT1}
    v_cmp_eq_u32 vcc, -1, v{vT0}
    s_cbranch_vccz {LHD}
    s_add_u32 s{sCNT}, s{sCNT}, 1
    s_cmp_lt_u32 s{sCNT}, {SPIN_MEM}
    s_cbranch_scc0 {LHD}
    """)
    ha_loads()
    a(f"s_branch {LH}")
    a(f"{LHD}:")
    a.stamp(10)
    for r in range(4):
        a(f"v_mul_f32 v{vH+r}, v{vFA}, v{vH+r}")
    for r in range(4):
        a(f"v_fmac_f32 v{vH+r}, v{vFB}, v{vH+4+r}")
    a(f"""
    s_nop 0
    v_permlane16_swap_b32 v{vH}, v{vH+1}
    v_permlane16_swap_b32 v{vH+2}, v{vH+3}
    v_add_f32 v{vH}, v{vH}, v{vH+1}
    v_add_f32 v{vH+2}, v{vH+2}, v{vH+3}
    s_nop 1
    v_permlane32_swap_b32 v{vH}, v{vH+2}
    v_add_f32 v{vH}, v{vH}, v{vH+2}
    s_nop 1
    v_add_f32_dpp v{vH}, v{vH}, v{vH} row_ror:4 row_mask:0xf bank_mask:0xf
    s_nop 1
    v_add_f32_dpp v{vH}, v{vH}, v{vH} row_ror:8 row_mask:0xf bank_mask:0xf
    v_cvt_pk_bf16_f32 v{vH}, v{vH}, v{vH}
    """)
    a.exec_pat(0x000F000F)
    a(f"ds_write_b16 v{vOS}, v{vH}")
    a.exec_all()
    a(f"""
    s_waitcnt lgkmcnt(0)
    s_barrier
    ds_read2_b64 v[{vOF}:{vOF+3}], v{vOB} offset0:0 offset1:4
    ds_read2_b64 v[{vOF+4}:{vOF+7}], v{vOB} offset0:8 offset1:12
    s_waitcnt lgkmcnt(0)
    """)
    for J in range(2):
        for t in range(2):
            c = "0" if J == 0 else f"v[{vOD+4*t}:{vOD+4*t+3}]"
            a(f"v_mfma_f32_16x16x32_bf16 v[{vOD+4*t}:{vOD+4*t+3}], v[{vWF+8*t+4*J}:{vWF+8*t+4*J+3}], v[{vOF+4*J}:{vOF+4*J+3}], {c}")
    LNB = a.lab("nohb")
    a(f"""
    s_mov_b32 s{sM1}, 0x00020002
    s_mov_b32 s{sM1+1}, 0x00020002
    s_cmp_ge_u32 s{sX3}, 28
    s_cbranch_scc1 {LNB}
    s_nop 4
    """)
    for r in range(4):
        a(f"v_cndmask_b32 v{vOD+r}, v{vOD+r}, v{vOD+4+r}, s[{sM1}:{sM1+1}]")
    a.exec_pat(0x00030003)
    a(f"buffer_store_dwordx4 v[{vOD}:{vOD+3}], v{vHB}, s[{WS}:{WS+3}], s{sX2} offen sc1")
    a.exec_all()
    a(f"{LNB}:")
    a.stamp(11)
    a("s_cmp_eq_u32 s63, 0")
    a("s_cbranch_scc1 L_fin")
    vF = 28
    a(f"s_lshl_b32 s{sX0}, s{sB}, 12")
    a(f"s_add_u32 s{sX0}, s{sX0}, {WS_HB}")
    a.srd(RO, 14, 15, 896)
    LF, LFD = a.lab("fb"), a.lab("fbd")
    a(f"s_mov_b32 s{sCNT}, 0")
    a(f"{LF}:")
    for i in range(4):
        a(f"buffer_load_dwordx4 v[{vF+4*i}:{vF+4*i+3}], v{vHA}, s[{WS}:{WS+3}], s{sX0} offen offset:{1024*i} sc1")
    a("s_waitcnt vmcnt(0)")
    a(f"""
    v_max3_u32 v{vT0}, v{vF}, v{vF+1}, v{vF+2}
    v_max3_u32 v{vT1}, v{vF+3}, v{vF+4}, v{vF+5}
    v_max3_u32 v{vT2}, v{vF+6}, v{vF+7}, v{vF+8}
    v_max3_u32 v{vT0}, v{vT0}, v{vF+9}, v{vF+10}
    v_max3_u32 v{vT1}, v{vT1}, v{vF+11}, v{vF+12}
    v_max3_u32 v{vT2}, v{vT2}, v{vF+13}, v{vF+14}
    v_max3_u32 v{vT0}, v{vT0}, v{vT1}, v{vF+15}
    v_max_u32 v{vT0}, v{vT0}, v{vT2}
    v_cmp_eq_u32 vcc, -1, v{vT0}
    s_cbranch_vccz {LFD}
    s_add_u32 s{sCNT}, s{sCNT}, 1
    s_cmp_lt_u32 s{sCNT}, {SPIN_MEM}
    s_cbranch_scc1 {LF}
    {LFD}:
    """)
    for r in range(4):
        a(f"v_add_f32 v{vF+r}, v{vF+r}, v{vF+4+r}")
        a(f"v_add_f32 v{vF+8+r}, v{vF+8+r}, v{vF+12+r}")
    for r in range(4):
        a(f"v_add_f32 v{vF+r}, v{vF+r}, v{vF+8+r}")
    a(f"""
    s_nop 0
    v_permlane16_swap_b32 v{vF}, v{vF+1}
    v_permlane16_swap_b32 v{vF+2}, v{vF+3}
    v_add_f32 v{vF}, v{vF}, v{vF+1}
    v_add_f32 v{vF+2}, v{vF+2}, v{vF+3}
    s_nop 1
    v_permlane32_swap_b32 v{vF}, v{vF+2}
    v_add_f32 v{vF}, v{vF}, v{vF+2}
    s_nop 1
    v_add_f32_dpp v{vF}, v{vF}, v{vF} row_ror:4 row_mask:0xf bank_mask:0xf
    s_nop 1
    v_add_f32_dpp v{vF}, v{vF}, v{vF} row_ror:8 row_mask:0xf bank_mask:0xf
    v_cvt_pk_bf16_f32 v{vF}, v{vF}, v{vF}
    v_and_b32 v{vT0}, 3, v{vL}
    v_lshlrev_b32 v{vT0}, 2, v{vT0}
    v_add_u32 v{vT0}, v{vT0}, v{vKG}
    v_lshlrev_b32 v{vT0}, 1, v{vT0}
    s_lshl_b32 s{sT0}, s{sB}, 5
    """)
    a.exec_pat(0x000F000F)
    a(f"buffer_store_short v{vF}, v{vT0}, s[{RO}:{RO+3}], s{sT0} offen")
    a(f"""
    s_cmp_lg_u32 s{sB}, 0
    s_cbranch_scc1 L_fin
    s_mov_b64 exec, 1
    v_mov_b32 v{vT1}, s{sTAG}
    v_mov_b32 v{vT2}, 0
    buffer_store_dword v{vT1}, v{vT2}, s[{WS}:{WS+3}], 0 offen sc1
    """)
    a("L_fin:")
    a.exec_all()
    a.stamp(12)
    if stamps:
        a("s_branch L_dump")
    else:
        a("s_endpgm")

    a("L_loader:")
    vKO, vVO, vTM = 2, 3, 4
    vFL2, vONE2 = 5, 6
    vU0, vU1, vU2 = 7, 8, 9
    vTRL = 10
    vKG2, vJ2 = 14, 15
    vB = 16
    vAF = 80
    vACC2 = 112
    vPP = 116
    vMM = 148
    vHS = 156
    a(f"""
    v_lshrrev_b32 v{vU0}, 5, v{vL}
    v_and_b32 v{vU1}, 31, v{vL}
    v_xor_b32 v{vU1}, v{vU1}, v{vU0}
    v_lshlrev_b32 v{vU1}, 4, v{vU1}
    v_lshlrev_b32 v{vU0}, 9, v{vU0}
    v_add_u32 v{vKO}, v{vU0}, v{vU1}
    v_lshrrev_b32 v{vU0}, 3, v{vL}
    v_and_b32 v{vU1}, 6, v{vU0}
    v_and_b32 v{vU2}, 7, v{vL}
    v_xor_b32 v{vU1}, v{vU1}, v{vU2}
    v_lshlrev_b32 v{vU1}, 4, v{vU1}
    v_lshlrev_b32 v{vU0}, 9, v{vU0}
    v_add_u32 v{vVO}, v{vU0}, v{vU1}
    v_mov_b32 v{vFL2}, {FL}
    v_mov_b32 v{vONE2}, 1
    """)
    rot(rotk, sROTK)
    a(f"s_and_b32 s{sROTK}, s{sROTK}, 14")
    rot(rotv, sROTV)
    a(f"""
    s_lshl_b32 s{sX0}, s{sG}, 25
    s_add_u32 s{sX0}, s{sX0}, {(65536-4096)*512}
    s_lshl_b32 s{sT0}, s{sC}, 16
    s_add_u32 s{sX0}, s{sX0}, s{sT0}
    s_lshl_b32 s{sT0}, s{sW}, 14
    s_add_u32 s{sT1}, s{sX0}, s{sT0}
    s_lshl_b32 s{sT2}, s{sW}, 7
    s_add_u32 s{sT3}, s{sX0}, s{sT2}
    s_add_u32 s{sX1}, s{sT0}, {KL}
    s_add_u32 s{sX2}, s{sT0}, {VL}
    s_waitcnt lgkmcnt(0)
    s_add_u32 s{RA}, s6, s{sT1}
    s_addc_u32 s{RA+1}, s7, 0
    s_and_b32 s{RA+1}, s{RA+1}, 0xffff
    s_mov_b32 s{RA+2}, 16384
    s_mov_b32 s{RA+3}, 0x20000
    s_add_u32 s{RB}, s8, s{sT3}
    s_addc_u32 s{RB+1}, s9, 0
    s_and_b32 s{RB+1}, s{RB+1}, 0xffff
    s_sub_u32 s{RB+2}, 65536, s{sT2}
    s_mov_b32 s{RB+3}, 0x20000
    """)
    for idx in range(32):
        isK = idx < 16
        i = idx & 15
        if idx >= depth:
            a(f"s_waitcnt vmcnt({depth-1})")
            done = idx - depth
            if trig and done == trig - 1:
                a.signal(vFL2, F_H, vONE2)
            if done == 15:
                a("s_mov_b64 exec, 1")
                a(f"v_mov_b32 v{vU0}, s{sW}")
                a(f"v_lshlrev_b32 v{vU0}, 2, v{vU0}")
                a(f"v_add_u32 v{vU0}, v{vFL2}, v{vU0}")
                a(f"ds_write_b32 v{vU0}, v{vONE2} offset:{F_K}")
                a.exec_all()
                a.stamp(2)
        if isK:
            a(f"s_add_u32 s{sT0}, s{sROTK}, {i}")
            a(f"s_and_b32 s{sT0}, s{sT0}, 15")
            a(f"s_lshl_b32 s{sT0}, s{sT0}, 10")
            a(f"s_add_u32 m0, s{sX1}, {1024*i}")
            x = ((2 * i) & 15) << 4
            if x:
                a(f"v_xor_b32 v{vTM}, {x}, v{vKO}")
                a(f"buffer_load_dwordx4 v{vTM}, s[{RA}:{RA+3}], s{sT0} offen{NT} lds")
            else:
                a("s_nop 0")
                a(f"buffer_load_dwordx4 v{vKO}, s[{RA}:{RA+3}], s{sT0} offen{NT} lds")
        else:
            a(f"s_add_u32 s{sT0}, s{sROTV}, {i}")
            a(f"s_and_b32 s{sT0}, s{sT0}, 15")
            a(f"s_add_u32 m0, s{sX2}, {1024*i}")
            a(f"s_lshl_b32 s{sT0}, s{sT0}, 12")
            a(f"buffer_load_dwordx4 v{vVO}, s[{RB}:{RB+3}], s{sT0} offen{NT} lds")
        if idx == depth - 1:
            a("s_barrier")
            a.stamp(1)
            for r in range(64):
                a(f"v_mov_b32 v{vB+r}, 0")
            a(f"v_lshrrev_b32 v{vKG2}, 4, v{vL}")
            a(f"v_and_b32 v{vJ2}, 15, v{vL}")
            a.tr_addrs(vTRL, f"s{sX2}", vL, vU0, vU1, vU2)
            for r in range(4):
                a(f"v_mov_b32 v{vACC2+r}, 0")
    a.signal(vFL2, F_V, vONE2)
    a.stamp(3)
    a.srd(WS, 18, 19, WS_SIZE)
    a(f"""
    v_and_b32 v{vU0}, 1, v{vJ2}
    v_lshlrev_b32 v{vU0}, 4, v{vU0}
    v_lshrrev_b32 v{vU1}, 1, v{vJ2}
    v_add_u32 v{vU0}, v{vU0}, v{vU1}
    v_lshlrev_b32 v{vU0}, 11, v{vU0}
    v_lshlrev_b32 v{vU1}, 4, v{vKG2}
    v_add_u32 v{vHS}, v{vU0}, v{vU1}
    s_lshl_b32 s{sX3}, s{sG}, 16
    s_lshl_b32 s{sT0}, s{sW}, 13
    s_add_u32 s{sX3}, s{sX3}, s{sT0}
    s_lshl_b32 s{sT0}, s{sC}, 6
    s_add_u32 s{sX3}, s{sX3}, s{sT0}
    s_add_u32 s{sX3}, s{sX3}, {WS_HA}
    """)
    vPA, vMA = 160, 168
    a(f"""
    v_lshrrev_b32 v{vU0}, 1, v{vKG2}
    v_add_u32 v{vU0}, s{sROTV}, v{vU0}
    v_and_b32 v{vU1}, 1, v{vKG2}
    v_lshlrev_b32 v{vU1}, 4, v{vU1}
    v_and_b32 v{vU2}, 1, v{vJ2}
    v_lshlrev_b32 v{vTM}, 9, v{vU2}
    v_add_u32 v{vU1}, v{vU1}, v{vTM}
    v_add_u32 v{vU1}, {PL}, v{vU1}
    v_lshlrev_b32 v{vU2}, 3, v{vU2}
    v_add_u32 v{vU2}, {SL}, v{vU2}
    """)
    for k in range(8):
        a(f"v_add_u32 v{vTM}, {2*k}, v{vU0}")
        a(f"v_and_b32 v{vTM}, 15, v{vTM}")
        a(f"v_lshlrev_b32 v{vPA+k}, 5, v{vTM}")
        a(f"v_add_u32 v{vPA+k}, v{vPA+k}, v{vU1}")
        a(f"v_lshrrev_b32 v{vTM}, 2, v{vTM}")
        a(f"v_lshlrev_b32 v{vTM}, 4, v{vTM}")
        a(f"v_add_u32 v{vMA+k}, v{vTM}, v{vU2}")
    a.spin_lds(vFL2, F_P, 4, vTM)
    a.stamp(4)
    vM4 = 176
    for w_ in range(4):
        a(f"ds_read_b32 v{vM4+w_}, v{vU2} offset:{16*w_}")
    for k in range(8):
        a(f"ds_read_b32 v{vMM+k}, v{vMA+k}")
    a("s_waitcnt lgkmcnt(8)")
    a(f"v_max3_f32 v{vM4}, v{vM4}, v{vM4+1}, v{vM4+2}")
    a(f"v_max_f32 v{vM4}, v{vM4}, v{vM4+3}")
    for k in range(8):
        a(f"ds_read_b128 v[{vPP+4*k}:{vPP+4*k+3}], v{vPA+k}")
        if k == 3:
            a("s_waitcnt lgkmcnt(4)")
            for kk in range(8):
                a(f"v_sub_f32 v{vMM+kk}, v{vMM+kk}, v{vM4}")
            for kk in range(8):
                a(f"v_exp_f32 v{vMM+kk}, v{vMM+kk}")
    a("s_waitcnt lgkmcnt(0)")
    for k in range(8):
        for r in range(4):
            a(f"v_mul_f32 v{vPP+4*k+r}, v{vMM+k}, v{vPP+4*k+r}")
    for t in range(4):
        a.exec_pat((3 << (2 * t)) * 0x00010001)
        for J in range(4):
            for e in range(4):
                k = 2 * J + (e >> 1)
                p0 = vPP + 4 * k + 2 * (e & 1)
                a(f"v_cvt_pk_bf16_f32 v{vB+16*t+4*J+e}, v{p0}, v{p0+1}")
    a.exec_all()
    a.stamp(5)
    for J in range(4):
        a(f"s_waitcnt vmcnt({12-4*J})")
        if J == 3:
            a.stamp(6)
        s = vAF + 16 * (J & 1)
        for t in range(4):
            for hf in range(2):
                r = s + 4 * t + 2 * hf
                a(f"ds_read_b64_tr_b16 v[{r}:{r+1}], v{vTRL+t} offset:{1024*(4*J+2*hf)}")
        for t in range(4):
            a(f"s_waitcnt lgkmcnt({6-2*t})")
            a(f"v_mfma_f32_16x16x32_bf16 v[{vACC2}:{vACC2+3}], v[{s+4*t}:{s+4*t+3}], v[{vB+16*t+4*J}:{vB+16*t+4*J+3}], v[{vACC2}:{vACC2+3}]")
    a.exec_pat(0x00FF00FF)
    a("s_nop 7")
    a(f"buffer_store_dwordx4 v[{vACC2}:{vACC2+3}], v{vHS}, s[{WS}:{WS+3}], s{sX3} offen sc1")
    a.exec_all()
    a.signal(vFL2, F_D, vONE2)
    a.stamp(7)
    if stamps:
        a("L_dump:")
        from stamps import dump
        a("s_waitcnt lgkmcnt(0)")
        a.srd(WS, 18, 19, 0x40000000)
        dump(a, 13, 8, wave_sreg=f"s{sWAVE}", wg_sreg=f"s{sB}", ws_srd=WS, vt=(200,))
    a("L_end:")
    a("s_endpgm")
    return a.text()


if __name__ == "__main__":
    import argparse
    ap = argparse.ArgumentParser()
    ap.add_argument("-o", default="k.s")
    ap.add_argument("--stamps", action="store_true")
    ap.add_argument("--depth", type=int, default=8)
    ap.add_argument("--trig", type=int, default=8)
    ap.add_argument("--rotk", default="2*c+4*w")
    ap.add_argument("--rotv", default="c+4*w")
    ap.add_argument("--prio", type=int, default=2)
    args = ap.parse_args()
    body = gen(depth=args.depth, stamps=args.stamps, trig=args.trig, rotk=args.rotk, rotv=args.rotv, prio_s=args.prio)
    open(args.o, "w").write(wrap(body, 256, 512, LDS_BYTES, vgpr=216 if args.stamps else 184, sgpr=102))
```

```python
import sys
from common import *

KL, VL, WL = 0, 65536, 131072
QL = 147456
PL = QL + 1024
SL = PL + 1024
OL = SL + 64
FL = OL + 128
LDS_BYTES = 150528
F_Q, F_P, F_V, F_H, F_D, F_K = 0, 4, 8, 12, 16, 20
WS_EP, WS_QG, WS_ST, WS_HA, WS_HB, WS_SIZE = 0, 0x1000, 0x30000, 0x40000, 0xC0000, 0x100000
SCALE_LOG2E = 0x3DB8AA3B
SPIN_LDS = 1 << 16
SPIN_MEM = 1 << 14

sB, sWAVE = 2, 3
sG, sC, sW, sTAG = 20, 21, 22, 23
sT0, sT1, sT2, sT3 = 24, 25, 26, 27
WS, RA, RB, RC, RO = 28, 32, 36, 40, 44
sCNT, sVAL = 48, 49
sM1, sM2, sM3 = 50, 52, 54
sROTK, sROTV = 56, 57
sX0, sX1, sX2, sX3 = 58, 59, 60, 61
sEX = 62


class G(Asm):
    def __init__(self, stamps=False):
        super().__init__()
        self.n = 0
        self.stamps = stamps

    def lab(self, base):
        self.n += 1
        return f"L_{base}_{self.n}"

    def stamp(self, k):
        if self.stamps:
            self(f"s_memrealtime s[{64+2*k}:{65+2*k}]")

    def srd(self, r, lo, hi, nrec):
        self(f"s_mov_b32 s{r}, s{lo}")
        self(f"s_and_b32 s{r+1}, s{hi}, 0xffff")
        self(f"s_mov_b32 s{r+2}, {nrec}")
        self(f"s_mov_b32 s{r+3}, 0x20000")

    def exec_all(self):
        self("s_mov_b64 exec, -1")

    def exec_pat(self, lo, hi=None):
        hi = lo if hi is None else hi
        self(f"s_mov_b32 exec_lo, {lo:#x}")
        self(f"s_mov_b32 exec_hi, {hi:#x}")

    def signal(self, vaddr, off, vone):
        self("s_mov_b64 exec, 1")
        self(f"ds_add_u32 v{vaddr}, v{vone} offset:{off}")
        self.exec_all()

    def spin_lds(self, vaddr, off, target, vt):
        L, D = self.lab("spin"), self.lab("spun")
        self(f"s_mov_b32 s{sCNT}, 0")
        self(f"{L}:")
        self(f"ds_read_b32 v{vt}, v{vaddr} offset:{off}")
        self("s_waitcnt lgkmcnt(0)")
        self(f"v_readfirstlane_b32 s{sVAL}, v{vt}")
        self(f"s_cmp_ge_u32 s{sVAL}, {target}")
        self(f"s_cbranch_scc1 {D}")
        self(f"s_add_u32 s{sCNT}, s{sCNT}, 1")
        self(f"s_cmp_lt_u32 s{sCNT}, {SPIN_LDS}")
        self("s_sleep 1")
        self(f"s_cbranch_scc1 {L}")
        self(f"{D}:")

    def tr_addrs(self, dst, base_sexpr, vl, t0, t1, t2):
        self(f"v_lshrrev_b32 v{t0}, 2, v{vl}")
        self(f"v_and_b32 v{t1}, 7, v{t0}")
        self(f"v_lshrrev_b32 v{t0}, 5, v{vl}")
        self(f"v_lshlrev_b32 v{t0}, 10, v{t0}")
        self(f"v_lshlrev_b32 v{t2}, 7, v{t1}")
        self(f"v_add_u32 v{t0}, v{t0}, v{t2}")
        self(f"v_and_b32 v{t2}, 1, v{vl}")
        self(f"v_lshlrev_b32 v{t2}, 3, v{t2}")
        self(f"v_add_u32 v{t0}, v{t0}, v{t2}")
        self(f"v_add_u32 v{t0}, {base_sexpr}, v{t0}")
        self(f"v_and_b32 v{t1}, 6, v{t1}")
        self(f"v_bfe_u32 v{t2}, v{vl}, 1, 1")
        self(f"v_or_b32 v{t1}, v{t1}, v{t2}")
        for t in range(4):
            self(f"v_xor_b32 v{t2}, {2*t}, v{t1}")
            self(f"v_lshlrev_b32 v{t2}, 4, v{t2}")
            self(f"v_add_u32 v{dst+t}, v{t0}, v{t2}")


def gen(depth=8, stamps=False, diag=False, trig=8, rotk="2*c+4*w", rotv="c+4*w", prio_s=2, nt="nt"):
    a = G(stamps)
    NT = (" " + nt) if nt else ""
    vL = 1
    a(f"""
    s_cmp_ge_u32 s{sB}, 256
    s_cbranch_scc1 L_end
    s_load_dwordx16 s[4:19], s[0:1], 0
    """)
    a.stamp(0)
    if diag:
        a("s_memrealtime s[90:91]")
        a("s_memtime s[92:93]")
    if stamps:
        for r in range(66, 96):
            a(f"s_mov_b32 s{r}, 0")
    a(f"""
    v_lshrrev_b32 v2, 6, v0
    v_and_b32 v{vL}, 63, v0
    v_readfirstlane_b32 s{sWAVE}, v2
    s_and_b32 s{sG}, s{sB}, 7
    s_lshr_b32 s{sC}, s{sB}, 3
    s_and_b32 s{sW}, s{sWAVE}, 3
    s_cmp_ge_u32 s{sWAVE}, 4
    s_cbranch_scc1 L_loader
    """)

    def rot(expr, dst):
        terms = expr.split("+")
        first = True
        for t in terms:
            if "*" in t:
                k, v = t.split("*")
            else:
                k, v = "1", t
            src = {"c": sC, "w": sW, "g": sG}[v]
            a(f"s_mul_i32 s{sT0}, s{src}, {k}")
            if first:
                a(f"s_mov_b32 s{dst}, s{sT0}"); first = False
            else:
                a(f"s_add_u32 s{dst}, s{dst}, s{sT0}")
        a(f"s_and_b32 s{dst}, s{dst}, 15")

    if prio_s:
        a(f"s_setprio {prio_s}")
    vKG, vJ, vFL, vONE = 2, 3, 4, 5
    vA0, vT0, vT1, vT2 = 6, 7, 8, 9
    vTR = 10
    vX = 16
    vBF = 32
    vACC = 96
    vPO = 112
    a(f"""
    v_lshrrev_b32 v{vKG}, 4, v{vL}
    v_and_b32 v{vJ}, 15, v{vL}
    v_mov_b32 v{vFL}, {FL}
    v_mov_b32 v{vONE}, 1
    s_cmp_lg_u32 s{sW}, 0
    s_cbranch_scc1 L_s_notq
    """)
    a(f"""
    v_lshrrev_b32 v{vT0}, 3, v{vL}
    v_and_b32 v{vT1}, 6, v{vT0}
    v_and_b32 v{vT2}, 7, v{vL}
    v_xor_b32 v{vT1}, v{vT1}, v{vT2}
    v_lshlrev_b32 v{vT1}, 4, v{vT1}
    v_lshlrev_b32 v{vT0}, 13, v{vT0}
    v_add_u32 v{vA0}, v{vT0}, v{vT1}
    s_lshr_b32 s{sX0}, s{sC}, 3
    s_and_b32 s{sX1}, s{sC}, 7
    s_mul_i32 s{sT0}, s{sX0}, {112*8192}
    s_lshl_b32 s{sT1}, s{sG}, 10
    s_add_u32 s{sT0}, s{sT0}, s{sT1}
    s_lshl_b32 s{sT1}, s{sX1}, 7
    s_add_u32 s{sT0}, s{sT0}, s{sT1}
    s_mul_i32 s{sT2}, s{sX0}, 224
    v_lshlrev_b32 v{vT2}, 3, v{vKG}
    v_add_u32 v{vT2}, s{sT2}, v{vT2}
    s_mov_b32 m0, {WL}
    s_mov_b32 s{sT3}, 0
    s_waitcnt lgkmcnt(0)
    s_add_u32 s{RA}, s10, s{sT0}
    s_addc_u32 s{RA+1}, s11, 0
    s_and_b32 s{RA+1}, s{RA+1}, 0xffff
    s_mov_b32 s{RA+2}, {111*8192+128}
    s_mov_b32 s{RA+3}, 0x20000
    """)
    for ii in range(14):
        a(f"buffer_load_dwordx4 v{vA0}, s[{RA}:{RA+3}], s{sT3} offen{NT} lds")
        if ii < 13:
            a(f"s_add_u32 m0, m0, 1024")
            a(f"s_add_u32 s{sT3}, s{sT3}, 65536")
    a.srd(RB, 4, 5, 896)
    for jj in range(7):
        a(f"buffer_load_dwordx2 v[{vX+2*jj}:{vX+2*jj+1}], v{vT2}, s[{RB}:{RB+3}], 0 offen offset:{32*jj}")
    a(f"s_load_dword s{sTAG}, s[18:19], {WS_EP}")
    a.srd(WS, 18, 19, WS_SIZE)
    for r in range(4):
        a(f"v_mov_b32 v{vPO+r}, -1")
    a(f"""
    v_lshrrev_b32 v{vT0}, 2, v{vL}
    v_and_b32 v{vT1}, 3, v{vL}
    v_lshlrev_b32 v{vT1}, 4, v{vT1}
    v_lshlrev_b32 v{vA0}, 11, v{vT0}
    v_add_u32 v{vA0}, v{vA0}, v{vT1}
    s_lshl_b32 s{sT0}, s{sG}, 16
    s_lshl_b32 s{sT1}, s{sC}, 6
    s_add_u32 s{sT0}, s{sT0}, s{sT1}
    s_add_u32 s{sT0}, s{sT0}, {WS_HA}
    s_add_u32 s{sT1}, s{sT0}, 32768
    buffer_store_dwordx4 v[{vPO}:{vPO+3}], v{vA0}, s[{WS}:{WS+3}], s{sT0} offen sc1
    buffer_store_dwordx4 v[{vPO}:{vPO+3}], v{vA0}, s[{WS}:{WS+3}], s{sT1} offen sc1
    v_lshlrev_b32 v{vT0}, 12, v{vT0}
    v_add_u32 v{vT0}, v{vT0}, v{vT1}
    s_and_b32 s{sT2}, s{sC}, 3
    s_lshl_b32 s{sT0}, s{sT2}, 15
    s_lshr_b32 s{sT1}, s{sC}, 2
    s_lshl_b32 s{sT3}, s{sG}, 3
    s_add_u32 s{sT1}, s{sT1}, s{sT3}
    s_lshl_b32 s{sT1}, s{sT1}, 6
    s_add_u32 s{sT0}, s{sT0}, s{sT1}
    s_add_u32 s{sT0}, s{sT0}, {WS_HB}
    s_cmp_eq_u32 s{sT2}, 3
    s_cselect_b32 exec_lo, 0xffff, -1
    s_mov_b32 exec_hi, 0
    buffer_store_dwordx4 v[{vPO}:{vPO+3}], v{vT0}, s[{WS}:{WS+3}], s{sT0} offen sc1
    s_mov_b64 exec, 3
    v_lshlrev_b32 v{vT1}, 8, v{vL}
    s_lshl_b32 s{sT0}, s{sG}, 9
    s_lshl_b32 s{sT1}, s{sC}, 3
    s_add_u32 s{sT0}, s{sT0}, s{sT1}
    s_add_u32 s{sT0}, s{sT0}, {WS_ST}
    buffer_store_dwordx2 v[{vPO}:{vPO+1}], v{vT1}, s[{WS}:{WS+3}], s{sT0} offen sc1
    s_mov_b64 exec, -1
    s_barrier
    """)
    a.stamp(1)
    a(f"s_mov_b32 s{sT3}, {WL}")
    a.tr_addrs(vTR, f"s{sT3}", vL, vT0, vT1, vT2)
    for r in (vX + 14, vX + 15):
        a(f"v_mov_b32 v{r}, 0")
    for t in range(4):
        a(f"v_mov_b32 v{vBF+16*t+14}, 0")
        a(f"v_mov_b32 v{vBF+16*t+15}, 0")
    a("s_waitcnt vmcnt(4)")
    a.stamp(2)

    def q_reads(t):
        for jj in range(7):
            a(f"ds_read_b64_tr_b16 v[{vBF+16*t+2*jj}:{vBF+16*t+2*jj+1}], v{vTR+t} offset:{2048*jj}")

    def q_mfma(t):
        for J in range(4):
            c = "0" if J == 0 else f"v[{vACC+4*t}:{vACC+4*t+3}]"
            a(f"v_mfma_f32_16x16x32_bf16 v[{vACC+4*t}:{vACC+4*t+3}], v[{vX+4*J}:{vX+4*J+3}], v[{vBF+16*t+4*J}:{vBF+16*t+4*J+3}], {c}")
    q_reads(0); q_reads(1)
    a("s_waitcnt lgkmcnt(7)"); q_mfma(0)
    q_reads(2)
    a("s_waitcnt lgkmcnt(7)"); q_mfma(1)
    q_reads(3)
    a("s_waitcnt lgkmcnt(7)"); q_mfma(2)
    a("s_waitcnt lgkmcnt(0)"); q_mfma(3)
    a(f"""
    s_mov_b32 s{sM1}, 0xffff0000
    s_mov_b32 s{sM1+1}, 0
    s_mov_b32 s{sM2}, 0
    s_mov_b32 s{sM2+1}, 0xffff
    s_mov_b32 s{sM3}, 0
    s_mov_b32 s{sM3+1}, 0xffff0000
    s_mul_i32 s{sTAG}, s{sTAG}, 0x9E3779B1
    s_add_u32 s{sTAG}, s{sTAG}, 0x7F4A7C15
    s_lshl_b32 s{sT0}, s{sG}, 14
    s_lshl_b32 s{sT1}, s{sX0}, 12
    s_add_u32 s{sT0}, s{sT0}, s{sT1}
    s_lshl_b32 s{sT1}, s{sX1}, 9
    s_add_u32 s{sT0}, s{sT0}, s{sT1}
    s_add_u32 s{sT0}, s{sT0}, {WS_QG}
    v_lshlrev_b32 v{vA0}, 3, v{vL}
    s_nop 4
    """)
    a(f"""
    v_cndmask_b32 v8, v{vACC}, v{vACC+4}, s[{sM1}:{sM1+1}]
    v_cndmask_b32 v8, v8, v{vACC+8}, s[{sM2}:{sM2+1}]
    v_cndmask_b32 v8, v8, v{vACC+12}, s[{sM3}:{sM3+1}]
    v_mov_b32 v9, s{sTAG}
    s_waitcnt vmcnt(0)
    buffer_store_dwordx2 v[8:9], v{vA0}, s[{WS}:{WS+3}], s{sT0} offen sc1
    """)
    a.stamp(3)
    a("s_branch L_s_common")
    a("L_s_notq:")
    a(f"""
    s_cmp_lg_u32 s{sW}, 1
    s_cbranch_scc1 L_s_noinit
    v_lshlrev_b32 v{vT0}, 2, v{vL}
    v_add_u32 v{vT0}, {FL}, v{vT0}
    v_mov_b32 v{vT1}, 0
    s_mov_b64 exec, 0xffff
    ds_write_b32 v{vT0}, v{vT1}
    s_mov_b64 exec, -1
    L_s_noinit:
    s_waitcnt lgkmcnt(0)
    s_load_dword s{sTAG}, s[18:19], {WS_EP}
    """)
    a.srd(WS, 18, 19, WS_SIZE)
    a(f"""
    s_waitcnt lgkmcnt(0)
    s_mul_i32 s{sTAG}, s{sTAG}, 0x9E3779B1
    s_add_u32 s{sTAG}, s{sTAG}, 0x7F4A7C15
    s_barrier
    """)
    a.stamp(1)
    a("L_s_common:")
    vG = 16
    vEV = 32
    vGA, vEA = 10, 11
    rot(rotk, sROTK)
    a(f"s_and_b32 s{sROTK}, s{sROTK}, 14")
    a(f"""
    v_lshlrev_b32 v{vGA}, 4, v{vL}
    s_lshl_b32 s{sX0}, s{sG}, 14
    s_lshl_b32 s{sT0}, s{sW}, 10
    s_add_u32 s{sX0}, s{sX0}, s{sT0}
    s_add_u32 s{sX0}, s{sX0}, {WS_QG}
    s_add_u32 s{sX1}, s{sX0}, 4096
    s_add_u32 s{sX2}, s{sX0}, 8192
    s_add_u32 s{sX3}, s{sX0}, 12288
    """)
    a(f"""
    s_lshr_b32 s{sT0}, s{sB}, 3
    v_and_b32 v{vT0}, 7, v{vL}
    v_lshlrev_b32 v{vT0}, 2, v{vT0}
    v_add_u32 v{vT0}, s{sT0}, v{vT0}
    v_lshrrev_b32 v{vT1}, 3, v{vT0}
    v_lshlrev_b32 v{vT1}, 12, v{vT1}
    v_and_b32 v{vT0}, 7, v{vT0}
    v_lshlrev_b32 v{vT0}, 9, v{vT0}
    v_add_u32 v{vT0}, v{vT0}, v{vT1}
    v_lshrrev_b32 v{vT1}, 3, v{vL}
    v_lshlrev_b32 v{vT1}, 14, v{vT1}
    v_add_u32 v{vT0}, v{vT0}, v{vT1}
    v_add_u32 v{vEA}, {WS_QG}, v{vT0}
    s_cmp_lt_u32 s{sB}, 28
    s_cselect_b32 s{sT0}, 1, 0
    s_cmp_eq_u32 s{sW}, 3
    s_cselect_b32 s{sT1}, s{sT0}, 0
    s_mov_b32 s63, s{sT1}
    """)
    if trig:
        a.spin_lds(vFL, F_H, 4, vT0)
    a.stamp(4)
    LQ, LQD, LQN = a.lab("qg"), a.lab("qgd"), a.lab("qgn")
    a(f"s_mov_b32 s{sCNT}, 0")
    a(f"{LQ}:")
    for r in range(4):
        a(f"buffer_load_dwordx4 v[{vG+4*r}:{vG+4*r+3}], v{vGA}, s[{WS}:{WS+3}], s{sX0+r} offen sc1")
    a(f"""
    v_mov_b32 v{vEV+1}, s{sTAG}
    s_cmp_eq_u32 s63, 0
    s_cbranch_scc1 {LQN}
    buffer_load_dwordx2 v[{vEV}:{vEV+1}], v{vEA}, s[{WS}:{WS+3}], 0 offen sc1
    {LQN}:
    s_waitcnt vmcnt(0)
    v_max3_u32 v{vT0}, v{vG+1}, v{vG+3}, v{vG+5}
    v_min3_u32 v{vT1}, v{vG+1}, v{vG+3}, v{vG+5}
    v_max3_u32 v{vT0}, v{vT0}, v{vG+7}, v{vG+9}
    v_min3_u32 v{vT1}, v{vT1}, v{vG+7}, v{vG+9}
    v_max3_u32 v{vT0}, v{vT0}, v{vG+11}, v{vG+13}
    v_min3_u32 v{vT1}, v{vT1}, v{vG+11}, v{vG+13}
    v_max3_u32 v{vT0}, v{vT0}, v{vG+15}, v{vEV+1}
    v_min3_u32 v{vT1}, v{vT1}, v{vG+15}, v{vEV+1}
    v_xor_b32 v{vT0}, s{sTAG}, v{vT0}
    v_xor_b32 v{vT1}, s{sTAG}, v{vT1}
    v_or_b32 v{vT0}, v{vT0}, v{vT1}
    v_cmp_ne_u32 vcc, 0, v{vT0}
    s_cbranch_vccz {LQD}
    s_add_u32 s{sCNT}, s{sCNT}, 1
    s_cmp_lt_u32 s{sCNT}, {SPIN_MEM}
    s_cbranch_scc1 {LQ}
    {LQD}:
    v_add_f32 v{vG}, v{vG}, v{vG+4}
    v_add_f32 v{vG+2}, v{vG+2}, v{vG+6}
    v_add_f32 v{vG+8}, v{vG+8}, v{vG+12}
    v_add_f32 v{vG+10}, v{vG+10}, v{vG+14}
    v_add_f32 v{vG}, v{vG}, v{vG+8}
    v_add_f32 v{vG+2}, v{vG+2}, v{vG+10}
    v_cvt_pk_bf16_f32 v{vT0}, v{vG}, v{vG+2}
    v_lshlrev_b32 v{vT1}, 2, v{vL}
    s_lshl_b32 s{sT0}, s{sW}, 8
    s_add_u32 s{sT0}, s{sT0}, {QL}
    v_add_u32 v{vT1}, s{sT0}, v{vT1}
    ds_write_b32 v{vT1}, v{vT0}
    """)
    a.signal(vFL, F_Q, vONE)
    a.stamp(5)
    vQ = 16
    vK = 48
    vKA = 112
    vD = 120
    vS = 128
    vP = 136
    a(f"""
    v_and_b32 v{vT0}, 1, v{vJ}
    v_lshlrev_b32 v{vT0}, 9, v{vT0}
    v_lshlrev_b32 v{vT1}, 4, v{vKG}
    v_add_u32 v{vT0}, v{vT0}, v{vT1}
    v_add_u32 v{vA0}, {QL}, v{vT0}
    v_xor_b32 v{vT0}, v{vKG}, v{vJ}
    v_lshlrev_b32 v{vT0}, 4, v{vT0}
    v_lshlrev_b32 v{vT1}, 9, v{vJ}
    s_lshl_b32 s{sT0}, s{sW}, 14
    v_add_u32 v{vT1}, s{sT0}, v{vT1}
    """)
    for J in range(8):
        a(f"v_xor_b32 v{vT2}, {J<<6}, v{vT0}")
        a(f"v_add_u32 v{vKA+J}, v{vT1}, v{vT2}")
    a.spin_lds(vFL, F_Q, 4, vT2)
    for J in range(8):
        a(f"ds_read_b128 v[{vQ+4*J}:{vQ+4*J+3}], v{vA0} offset:{64*J}")
    a(f"v_mov_b32 v{vT0}, s{sW}")
    a(f"v_lshlrev_b32 v{vT0}, 2, v{vT0}")
    a(f"v_add_u32 v{vT0}, v{vFL}, v{vT0}")
    a.spin_lds(vT0, F_K, 1, vT2)
    a.stamp(6)
    for tt in range(2):
        for J in range(8):
            a(f"ds_read_b128 v[{vK+32*tt+4*J}:{vK+32*tt+4*J+3}], v{vKA+J} offset:{KL+8192*tt}")
        if tt == 0:
            continue
    a("s_waitcnt lgkmcnt(8)")
    for J in range(8):
        c = "0" if J == 0 else f"v[{vD}:{vD+3}]"
        a(f"v_mfma_f32_16x16x32_bf16 v[{vD}:{vD+3}], v[{vK+4*J}:{vK+4*J+3}], v[{vQ+4*J}:{vQ+4*J+3}], {c}")
    a("s_waitcnt lgkmcnt(0)")
    for J in range(8):
        c = "0" if J == 0 else f"v[{vD+4}:{vD+7}]"
        a(f"v_mfma_f32_16x16x32_bf16 v[{vD+4}:{vD+7}], v[{vK+32+4*J}:{vK+32+4*J+3}], v[{vQ+4*J}:{vQ+4*J+3}], {c}")
    vPA0, vPA1 = 10, 11
    a(f"""
    v_lshlrev_b32 v{vT0}, 1, v{vKG}
    v_add_u32 v{vT0}, s{sROTK}, v{vT0}
    v_add_u32 v{vT1}, 8, v{vT0}
    v_and_b32 v{vT0}, 15, v{vT0}
    v_and_b32 v{vT1}, 15, v{vT1}
    v_lshlrev_b32 v{vT0}, 3, v{vT0}
    v_lshlrev_b32 v{vT1}, 3, v{vT1}
    v_and_b32 v{vT2}, 1, v{vJ}
    v_lshlrev_b32 v{vT2}, 9, v{vT2}
    s_lshl_b32 s{sT0}, s{sW}, 7
    s_add_u32 s{sT0}, s{sT0}, {PL}
    v_add_u32 v{vT2}, s{sT0}, v{vT2}
    v_add_u32 v{vPA0}, v{vT2}, v{vT0}
    v_add_u32 v{vPA1}, v{vT2}, v{vT1}
    s_mov_b32 s{sT1}, 0xffff0000
    s_mov_b32 s{sT2}, {SCALE_LOG2E:#x}
    s_nop 1
    """)
    for e in range(4):
        a(f"v_cvt_pk_bf16_f32 v{vP+e}, v{vD+2*e}, v{vD+2*e+1}")
    for e in range(4):
        a(f"v_lshlrev_b32 v{vS+2*e}, 16, v{vP+e}")
        a(f"v_and_b32 v{vS+2*e+1}, s{sT1}, v{vP+e}")
    vMX, vSUM = 12, 13
    a(f"""
    v_max3_f32 v{vMX}, v{vS}, v{vS+1}, v{vS+2}
    v_max3_f32 v{vMX}, v{vMX}, v{vS+3}, v{vS+4}
    v_max3_f32 v{vMX}, v{vMX}, v{vS+5}, v{vS+6}
    v_max_f32 v{vMX}, v{vMX}, v{vS+7}
    v_mov_b32 v{vT0}, v{vMX}
    s_nop 1
    v_permlane16_swap_b32 v{vMX}, v{vT0}
    v_max_f32 v{vMX}, v{vMX}, v{vT0}
    v_mov_b32 v{vT0}, v{vMX}
    s_nop 1
    v_permlane32_swap_b32 v{vMX}, v{vT0}
    v_max_f32 v{vMX}, v{vMX}, v{vT0}
    v_mul_f32 v{vMX}, s{sT2}, v{vMX}
    """)
    for e in range(8):
        a(f"v_fma_f32 v{vP+e}, v{vS+e}, s{sT2}, -v{vMX}")
    for e in range(8):
        a(f"v_exp_f32 v{vP+e}, v{vP+e}")
    a(f"""
    s_nop 0
    v_add_f32 v{vT0}, v{vP}, v{vP+1}
    v_add_f32 v{vT1}, v{vP+2}, v{vP+3}
    v_add_f32 v{vT2}, v{vP+4}, v{vP+5}
    v_add_f32 v{vSUM}, v{vP+6}, v{vP+7}
    v_add_f32 v{vT0}, v{vT0}, v{vT1}
    v_add_f32 v{vSUM}, v{vSUM}, v{vT2}
    v_add_f32 v{vSUM}, v{vSUM}, v{vT0}
    """)
    a.exec_pat(0x00030003)
    a(f"ds_write_b128 v{vPA0}, v[{vP}:{vP+3}]")
    a(f"ds_write_b128 v{vPA1}, v[{vP+4}:{vP+7}]")
    a.exec_all()
    a(f"""
    v_mov_b32 v{vT0}, v{vSUM}
    s_nop 1
    v_permlane16_swap_b32 v{vSUM}, v{vT0}
    v_add_f32 v{vSUM}, v{vSUM}, v{vT0}
    v_mov_b32 v{vT0}, v{vSUM}
    s_nop 1
    v_permlane32_swap_b32 v{vSUM}, v{vT0}
    v_add_f32 v{vSUM}, v{vSUM}, v{vT0}
    v_lshlrev_b32 v{vT0}, 3, v{vL}
    s_lshl_b32 s{sT0}, s{sW}, 4
    s_add_u32 s{sT0}, s{sT0}, {SL}
    v_add_u32 v{vT0}, s{sT0}, v{vT0}
    s_mov_b64 exec, 3
    ds_write_b64 v{vT0}, v[{vMX}:{vMX+1}]
    s_mov_b64 exec, -1
    """)
    a.signal(vFL, F_P, vONE)
    a.stamp(7)
    LNS = a.lab("nostat")
    a(f"s_cmp_lg_u32 s{sW}, 0")
    a(f"s_cbranch_scc1 {LNS}")
    a.spin_lds(vFL, F_P, 4, vT2)
    a(f"""
    v_and_b32 v{vT0}, 1, v{vL}
    v_lshlrev_b32 v{vT0}, 3, v{vT0}
    v_add_u32 v{vT0}, {SL}, v{vT0}
    ds_read_b64 v[16:17], v{vT0}
    ds_read_b64 v[18:19], v{vT0} offset:16
    ds_read_b64 v[20:21], v{vT0} offset:32
    ds_read_b64 v[22:23], v{vT0} offset:48
    s_waitcnt lgkmcnt(0)
    v_max3_f32 v24, v16, v18, v20
    v_max_f32 v24, v24, v22
    v_sub_f32 v16, v16, v24
    v_sub_f32 v18, v18, v24
    v_sub_f32 v20, v20, v24
    v_sub_f32 v22, v22, v24
    v_exp_f32 v16, v16
    v_exp_f32 v18, v18
    v_exp_f32 v20, v20
    v_exp_f32 v22, v22
    s_nop 0
    v_mul_f32 v25, v16, v17
    v_fmac_f32 v25, v18, v19
    v_fmac_f32 v25, v20, v21
    v_fmac_f32 v25, v22, v23
    v_lshlrev_b32 v{vT1}, 8, v{vL}
    s_lshl_b32 s{sT0}, s{sG}, 9
    s_lshl_b32 s{sT1}, s{sC}, 3
    s_add_u32 s{sT0}, s{sT0}, s{sT1}
    s_add_u32 s{sT0}, s{sT0}, {WS_ST}
    s_mov_b64 exec, 3
    buffer_store_dwordx2 v[24:25], v{vT1}, s[{WS}:{WS+3}], s{sT0} offen sc1
    s_mov_b64 exec, -1
    {LNS}:
    """)
    vSA, vO0, vO1, vWA0, vWA1, vHA, vOS, vOB, vHB = 10, 11, 14, 15, 16, 17, 18, 19, 20
    vST = 22
    vFA, vFB = 26, 27
    a(f"""
    v_lshrrev_b32 v{vT0}, 2, v{vL}
    v_lshlrev_b32 v{vSA}, 3, v{vT0}
    s_lshl_b32 s{sX0}, s{sG}, 9
    s_lshr_b32 s{sT0}, s{sC}, 4
    s_lshl_b32 s{sT0}, s{sT0}, 8
    s_add_u32 s{sX0}, s{sX0}, s{sT0}
    s_add_u32 s{sX0}, s{sX0}, {WS_ST}
    v_lshlrev_b32 v{vT0}, 1, v{vKG}
    v_xor_b32 v{vT0}, v{vT0}, v{vJ}
    v_lshlrev_b32 v{vT0}, 4, v{vT0}
    v_mul_u32_u24 v{vT1}, 896, v{vKG}
    v_add_u32 v{vO0}, v{vT0}, v{vT1}
    v_xor_b32 v{vT0}, 128, v{vT0}
    v_add_u32 v{vO1}, v{vT0}, v{vT1}
    s_lshl_b32 s{sT0}, s{sG}, 9
    s_lshr_b32 s{sT1}, s{sC}, 2
    s_lshl_b32 s{sT1}, s{sT1}, 6
    s_add_u32 s{sT0}, s{sT0}, s{sT1}
    s_mul_i32 s{sT0}, s{sT0}, 896
    s_and_b32 s{sT1}, s{sC}, 3
    s_lshl_b32 s{sT1}, s{sT1}, 8
    s_add_u32 s{sT0}, s{sT0}, s{sT1}
    s_add_u32 s{RC}, s12, s{sT0}
    s_addc_u32 s{RC+1}, s13, 0
    s_and_b32 s{RC+1}, s{RC+1}, 0xffff
    s_sub_u32 s{RC+2}, 3670016, s{sT0}
    s_mov_b32 s{RC+3}, 0x20000
    """)
    a(f"""
    v_lshrrev_b32 v{vT0}, 2, v{vL}
    v_lshlrev_b32 v{vT1}, 8, v{vT0}
    v_and_b32 v{vT0}, 7, v{vT0}
    v_lshlrev_b32 v{vT0}, 1, v{vT0}
    v_bfe_u32 v{vT2}, v{vL}, 1, 1
    v_xor_b32 v{vT0}, v{vT0}, v{vT2}
    v_and_b32 v{vT2}, 1, v{vL}
    v_lshlrev_b32 v{vT2}, 3, v{vT2}
    v_add_u32 v{vT1}, v{vT1}, v{vT2}
    v_add_u32 v{vT1}, {WL}, v{vT1}
    s_lshl_b32 s{sT0}, s{sW}, 2
    v_xor_b32 v{vT2}, s{sT0}, v{vT0}
    v_lshlrev_b32 v{vT2}, 4, v{vT2}
    v_add_u32 v{vWA0}, v{vT1}, v{vT2}
    s_add_u32 s{sT0}, s{sT0}, 2
    v_xor_b32 v{vT2}, s{sT0}, v{vT0}
    v_lshlrev_b32 v{vT2}, 4, v{vT2}
    v_add_u32 v{vWA1}, v{vT1}, v{vT2}
    v_lshlrev_b32 v{vHA}, 4, v{vL}
    v_and_b32 v{vT0}, 3, v{vL}
    v_lshlrev_b32 v{vT0}, 2, v{vT0}
    v_add_u32 v{vT0}, v{vT0}, v{vKG}
    v_lshlrev_b32 v{vT0}, 1, v{vT0}
    s_lshl_b32 s{sT0}, s{sW}, 5
    s_add_u32 s{sT0}, s{sT0}, {OL}
    v_add_u32 v{vOS}, s{sT0}, v{vT0}
    v_lshlrev_b32 v{vT0}, 3, v{vKG}
    v_add_u32 v{vOB}, {OL}, v{vT0}
    v_and_b32 v{vT0}, 1, v{vJ}
    v_lshlrev_b32 v{vT0}, 12, v{vT0}
    v_lshlrev_b32 v{vT1}, 4, v{vKG}
    v_add_u32 v{vHB}, v{vT0}, v{vT1}
    s_lshl_b32 s{sX1}, s{sG}, 16
    s_lshr_b32 s{sT0}, s{sC}, 2
    s_lshl_b32 s{sT0}, s{sT0}, 2
    s_add_u32 s{sT0}, s{sT0}, s{sW}
    s_lshl_b32 s{sT0}, s{sT0}, 11
    s_add_u32 s{sX1}, s{sX1}, s{sT0}
    s_add_u32 s{sX1}, s{sX1}, {WS_HA}
    s_and_b32 s{sT0}, s{sC}, 3
    s_lshl_b32 s{sT0}, s{sT0}, 3
    s_lshl_b32 s{sT1}, s{sW}, 1
    s_add_u32 s{sX3}, s{sT0}, s{sT1}
    s_lshl_b32 s{sX2}, s{sX3}, 12
    s_lshr_b32 s{sT0}, s{sC}, 2
    s_lshl_b32 s{sT1}, s{sG}, 3
    s_add_u32 s{sT0}, s{sT0}, s{sT1}
    s_lshl_b32 s{sT0}, s{sT0}, 6
    s_add_u32 s{sX2}, s{sX2}, s{sT0}
    s_add_u32 s{sX2}, s{sX2}, {WS_HB}
    """)
    a.spin_lds(vFL, F_V, 4, vT2)
    a.stamp(8)
    def stats_loads():
        a(f"buffer_load_dwordx2 v[{vST}:{vST+1}], v{vSA}, s[{WS}:{WS+3}], s{sX0} offen sc1")
        a(f"buffer_load_dwordx2 v[{vST+2}:{vST+3}], v{vSA}, s[{WS}:{WS+3}], s{sX0} offen offset:128 sc1")
    stats_loads()
    a(f"s_lshl_b32 s{sT0}, s{sW}, 12")
    a(f"s_add_u32 s{sT0}, s{sT0}, {WL}")
    a(f"s_mov_b32 m0, s{sT0}")
    a(f"s_mul_i32 s{sT1}, s{sW}, {16*896}")
    for u in range(4):
        a(f"buffer_load_dwordx4 v{vO1 if u & 1 else vO0}, s[{RC}:{RC+3}], s{sT1} offen{NT} lds")
        if u < 3:
            a("s_add_u32 m0, m0, 1024")
            a(f"s_add_u32 s{sT1}, s{sT1}, {4*896}")
    LS, LSD = a.lab("st"), a.lab("std")
    a(f"s_mov_b32 s{sCNT}, 0")
    a("s_waitcnt vmcnt(4)")
    a(f"{LS}:")
    a(f"""
    v_max3_u32 v{vT0}, v{vST}, v{vST+1}, v{vST+2}
    v_max_u32 v{vT0}, v{vT0}, v{vST+3}
    v_cmp_eq_u32 vcc, -1, v{vT0}
    s_cbranch_vccz {LSD}
    s_add_u32 s{sCNT}, s{sCNT}, 1
    s_cmp_lt_u32 s{sCNT}, {SPIN_MEM}
    s_cbranch_scc0 {LSD}
    """)
    stats_loads()
    a("s_waitcnt vmcnt(0)")
    a(f"s_branch {LS}")
    a(f"{LSD}:")
    a(f"""
    v_max_f32 v{vT0}, v{vST}, v{vST+2}
    s_nop 1
    v_max_f32_dpp v{vT0}, v{vT0}, v{vT0} row_ror:4 row_mask:0xf bank_mask:0xf
    s_nop 1
    v_max_f32_dpp v{vT0}, v{vT0}, v{vT0} row_ror:8 row_mask:0xf bank_mask:0xf
    v_mov_b32 v{vT1}, v{vT0}
    s_nop 1
    v_permlane16_swap_b32 v{vT0}, v{vT1}
    v_max_f32 v{vT0}, v{vT0}, v{vT1}
    v_mov_b32 v{vT1}, v{vT0}
    s_nop 1
    v_permlane32_swap_b32 v{vT0}, v{vT1}
    v_max_f32 v{vT0}, v{vT0}, v{vT1}
    v_sub_f32 v{vFA}, v{vST}, v{vT0}
    v_sub_f32 v{vFB}, v{vST+2}, v{vT0}
    v_exp_f32 v{vFA}, v{vFA}
    v_exp_f32 v{vFB}, v{vFB}
    s_nop 0
    v_mul_f32 v{vT0}, v{vFA}, v{vST+1}
    v_fmac_f32 v{vT0}, v{vFB}, v{vST+3}
    s_nop 1
    v_add_f32_dpp v{vT0}, v{vT0}, v{vT0} row_ror:4 row_mask:0xf bank_mask:0xf
    s_nop 1
    v_add_f32_dpp v{vT0}, v{vT0}, v{vT0} row_ror:8 row_mask:0xf bank_mask:0xf
    v_mov_b32 v{vT1}, v{vT0}
    s_nop 1
    v_permlane16_swap_b32 v{vT0}, v{vT1}
    v_add_f32 v{vT0}, v{vT0}, v{vT1}
    v_mov_b32 v{vT1}, v{vT0}
    s_nop 1
    v_permlane32_swap_b32 v{vT0}, v{vT1}
    v_add_f32 v{vT0}, v{vT0}, v{vT1}
    v_rcp_f32 v{vT0}, v{vT0}
    s_nop 0
    v_mul_f32 v{vFA}, v{vFA}, v{vT0}
    v_mul_f32 v{vFB}, v{vFB}, v{vT0}
    """)
    a.stamp(9)
    a.spin_lds(vFL, F_D, 4, vT2)
    vH = 28
    vWF = 36
    vOF = 52
    vOD = 60

    def ha_loads():
        a(f"buffer_load_dwordx4 v[{vH}:{vH+3}], v{vHA}, s[{WS}:{WS+3}], s{sX1} offen sc1")
        a(f"buffer_load_dwordx4 v[{vH+4}:{vH+7}], v{vHA}, s[{WS}:{WS+3}], s{sX1} offen offset:1024 sc1")
    ha_loads()
    a("s_waitcnt vmcnt(2)")
    a("s_barrier")
    for t, va in ((0, vWA0), (1, vWA1)):
        for J in range(2):
            for hf in range(2):
                r = vWF + 8 * t + 4 * J + 2 * hf
                a(f"ds_read_b64_tr_b16 v[{r}:{r+1}], v{va} offset:{8192*J+4096*hf}")
    LH, LHD = a.lab("ha"), a.lab("had")
    a(f"s_mov_b32 s{sCNT}, 0")
    a(f"{LH}:")
    a(f"""
    s_waitcnt vmcnt(0)
    v_max3_u32 v{vT0}, v{vH}, v{vH+1}, v{vH+2}
    v_max3_u32 v{vT1}, v{vH+3}, v{vH+4}, v{vH+5}
    v_max3_u32 v{vT0}, v{vT0}, v{vH+6}, v{vH+7}
    v_max_u32 v{vT0}, v{vT0}, v{vT1}
    v_cmp_eq_u32 vcc, -1, v{vT0}
    s_cbranch_vccz {LHD}
    s_add_u32 s{sCNT}, s{sCNT}, 1
    s_cmp_lt_u32 s{sCNT}, {SPIN_MEM}
    s_cbranch_scc0 {LHD}
    """)
    ha_loads()
    a(f"s_branch {LH}")
    a(f"{LHD}:")
    a.stamp(10)
    for r in range(4):
        a(f"v_mul_f32 v{vH+r}, v{vFA}, v{vH+r}")
    for r in range(4):
        a(f"v_fmac_f32 v{vH+r}, v{vFB}, v{vH+4+r}")
    a(f"""
    s_nop 0
    v_permlane16_swap_b32 v{vH}, v{vH+1}
    v_permlane16_swap_b32 v{vH+2}, v{vH+3}
    v_add_f32 v{vH}, v{vH}, v{vH+1}
    v_add_f32 v{vH+2}, v{vH+2}, v{vH+3}
    s_nop 1
    v_permlane32_swap_b32 v{vH}, v{vH+2}
    v_add_f32 v{vH}, v{vH}, v{vH+2}
    s_nop 1
    v_add_f32_dpp v{vH}, v{vH}, v{vH} row_ror:4 row_mask:0xf bank_mask:0xf
    s_nop 1
    v_add_f32_dpp v{vH}, v{vH}, v{vH} row_ror:8 row_mask:0xf bank_mask:0xf
    v_cvt_pk_bf16_f32 v{vH}, v{vH}, v{vH}
    """)
    a.exec_pat(0x000F000F)
    a(f"ds_write_b16 v{vOS}, v{vH}")
    a.exec_all()
    a(f"""
    s_waitcnt lgkmcnt(0)
    s_barrier
    ds_read2_b64 v[{vOF}:{vOF+3}], v{vOB} offset0:0 offset1:4
    ds_read2_b64 v[{vOF+4}:{vOF+7}], v{vOB} offset0:8 offset1:12
    s_waitcnt lgkmcnt(0)
    """)
    for J in range(2):
        for t in range(2):
            c = "0" if J == 0 else f"v[{vOD+4*t}:{vOD+4*t+3}]"
            a(f"v_mfma_f32_16x16x32_bf16 v[{vOD+4*t}:{vOD+4*t+3}], v[{vWF+8*t+4*J}:{vWF+8*t+4*J+3}], v[{vOF+4*J}:{vOF+4*J+3}], {c}")
    LNB = a.lab("nohb")
    a(f"""
    s_mov_b32 s{sM1}, 0x00020002
    s_mov_b32 s{sM1+1}, 0x00020002
    s_cmp_ge_u32 s{sX3}, 28
    s_cbranch_scc1 {LNB}
    s_nop 4
    """)
    for r in range(4):
        a(f"v_cndmask_b32 v{vOD+r}, v{vOD+r}, v{vOD+4+r}, s[{sM1}:{sM1+1}]")
    a.exec_pat(0x00030003)
    a(f"buffer_store_dwordx4 v[{vOD}:{vOD+3}], v{vHB}, s[{WS}:{WS+3}], s{sX2} offen sc1")
    a.exec_all()
    a(f"{LNB}:")
    a.stamp(11)
    a("s_cmp_eq_u32 s63, 0")
    a("s_cbranch_scc1 L_fin")
    vF = 28
    a(f"s_lshl_b32 s{sX0}, s{sB}, 12")
    a(f"s_add_u32 s{sX0}, s{sX0}, {WS_HB}")
    a.srd(RO, 14, 15, 896)
    LF, LFD = a.lab("fb"), a.lab("fbd")
    a(f"s_mov_b32 s{sCNT}, 0")
    a(f"{LF}:")
    for i in range(4):
        a(f"buffer_load_dwordx4 v[{vF+4*i}:{vF+4*i+3}], v{vHA}, s[{WS}:{WS+3}], s{sX0} offen offset:{1024*i} sc1")
    a("s_waitcnt vmcnt(0)")
    a(f"""
    v_max3_u32 v{vT0}, v{vF}, v{vF+1}, v{vF+2}
    v_max3_u32 v{vT1}, v{vF+3}, v{vF+4}, v{vF+5}
    v_max3_u32 v{vT2}, v{vF+6}, v{vF+7}, v{vF+8}
    v_max3_u32 v{vT0}, v{vT0}, v{vF+9}, v{vF+10}
    v_max3_u32 v{vT1}, v{vT1}, v{vF+11}, v{vF+12}
    v_max3_u32 v{vT2}, v{vT2}, v{vF+13}, v{vF+14}
    v_max3_u32 v{vT0}, v{vT0}, v{vT1}, v{vF+15}
    v_max_u32 v{vT0}, v{vT0}, v{vT2}
    v_cmp_eq_u32 vcc, -1, v{vT0}
    s_cbranch_vccz {LFD}
    s_add_u32 s{sCNT}, s{sCNT}, 1
    s_cmp_lt_u32 s{sCNT}, {SPIN_MEM}
    s_cbranch_scc1 {LF}
    {LFD}:
    """)
    for r in range(4):
        a(f"v_add_f32 v{vF+r}, v{vF+r}, v{vF+4+r}")
        a(f"v_add_f32 v{vF+8+r}, v{vF+8+r}, v{vF+12+r}")
    for r in range(4):
        a(f"v_add_f32 v{vF+r}, v{vF+r}, v{vF+8+r}")
    a(f"""
    s_nop 0
    v_permlane16_swap_b32 v{vF}, v{vF+1}
    v_permlane16_swap_b32 v{vF+2}, v{vF+3}
    v_add_f32 v{vF}, v{vF}, v{vF+1}
    v_add_f32 v{vF+2}, v{vF+2}, v{vF+3}
    s_nop 1
    v_permlane32_swap_b32 v{vF}, v{vF+2}
    v_add_f32 v{vF}, v{vF}, v{vF+2}
    s_nop 1
    v_add_f32_dpp v{vF}, v{vF}, v{vF} row_ror:4 row_mask:0xf bank_mask:0xf
    s_nop 1
    v_add_f32_dpp v{vF}, v{vF}, v{vF} row_ror:8 row_mask:0xf bank_mask:0xf
    v_cvt_pk_bf16_f32 v{vF}, v{vF}, v{vF}
    v_and_b32 v{vT0}, 3, v{vL}
    v_lshlrev_b32 v{vT0}, 2, v{vT0}
    v_add_u32 v{vT0}, v{vT0}, v{vKG}
    v_lshlrev_b32 v{vT0}, 1, v{vT0}
    s_lshl_b32 s{sT0}, s{sB}, 5
    """)
    a.exec_pat(0x000F000F)
    a(f"buffer_store_short v{vF}, v{vT0}, s[{RO}:{RO+3}], s{sT0} offen")
    a(f"""
    s_cmp_lg_u32 s{sB}, 0
    s_cbranch_scc1 L_fin
    s_mov_b64 exec, 1
    v_mov_b32 v{vT1}, s{sTAG}
    v_mov_b32 v{vT2}, 0
    buffer_store_dword v{vT1}, v{vT2}, s[{WS}:{WS+3}], 0 offen sc1
    """)
    a("L_fin:")
    a.exec_all()
    if diag:
        a(f"""
        s_cmp_lg_u32 s{sW}, 3
        s_cbranch_scc1 L_diag_done
        s_memrealtime s[94:95]
        s_memtime s[96:97]
        s_waitcnt lgkmcnt(0)
        s_mov_b32 s{RO}, s16
        s_and_b32 s{RO+1}, s17, 0xffff
        s_mov_b32 s{RO+2}, 256
        s_mov_b32 s{RO+3}, 0x20000
        s_mov_b64 exec, 1
        v_mov_b32 v8, 0
        v_mov_b32 v9, s94
        buffer_atomic_umax v9, v8, s[{RO}:{RO+3}], 0 offen
        s_not_b32 s98, s90
        v_mov_b32 v10, s98
        buffer_atomic_umax v10, v8, s[{RO}:{RO+3}], 0 offen offset:4
        s_cmp_lg_u32 s{sB}, 0
        s_cbranch_scc1 L_diag_done
        s_sub_u32 s98, s94, s90
        s_sub_u32 s99, s96, s92
        v_mov_b32 v12, s98
        v_mov_b32 v13, s99
        buffer_store_dwordx2 v[12:13], v8, s[{RO}:{RO+3}], 0 offen offset:8
        L_diag_done:
        s_mov_b64 exec, -1
        """)
    a.stamp(12)
    if stamps:
        a("s_branch L_dump")
    else:
        a("s_endpgm")

    a("L_loader:")
    vKO, vVO, vTM = 2, 3, 4
    vFL2, vONE2 = 5, 6
    vU0, vU1, vU2 = 7, 8, 9
    vTRL = 10
    vKG2, vJ2 = 14, 15
    vB = 16
    vAF = 80
    vACC2 = 112
    vPP = 116
    vMM = 148
    vHS = 156
    a(f"""
    v_lshrrev_b32 v{vU0}, 5, v{vL}
    v_and_b32 v{vU1}, 31, v{vL}
    v_xor_b32 v{vU1}, v{vU1}, v{vU0}
    v_lshlrev_b32 v{vU1}, 4, v{vU1}
    v_lshlrev_b32 v{vU0}, 9, v{vU0}
    v_add_u32 v{vKO}, v{vU0}, v{vU1}
    v_lshrrev_b32 v{vU0}, 3, v{vL}
    v_and_b32 v{vU1}, 6, v{vU0}
    v_and_b32 v{vU2}, 7, v{vL}
    v_xor_b32 v{vU1}, v{vU1}, v{vU2}
    v_lshlrev_b32 v{vU1}, 4, v{vU1}
    v_lshlrev_b32 v{vU0}, 9, v{vU0}
    v_add_u32 v{vVO}, v{vU0}, v{vU1}
    v_mov_b32 v{vFL2}, {FL}
    v_mov_b32 v{vONE2}, 1
    """)
    rot(rotk, sROTK)
    a(f"s_and_b32 s{sROTK}, s{sROTK}, 14")
    rot(rotv, sROTV)
    a(f"""
    s_lshl_b32 s{sX0}, s{sG}, 25
    s_add_u32 s{sX0}, s{sX0}, {(65536-4096)*512}
    s_lshl_b32 s{sT0}, s{sC}, 16
    s_add_u32 s{sX0}, s{sX0}, s{sT0}
    s_lshl_b32 s{sT0}, s{sW}, 14
    s_add_u32 s{sT1}, s{sX0}, s{sT0}
    s_lshl_b32 s{sT2}, s{sW}, 7
    s_add_u32 s{sT3}, s{sX0}, s{sT2}
    s_add_u32 s{sX1}, s{sT0}, {KL}
    s_add_u32 s{sX2}, s{sT0}, {VL}
    s_waitcnt lgkmcnt(0)
    s_add_u32 s{RA}, s6, s{sT1}
    s_addc_u32 s{RA+1}, s7, 0
    s_and_b32 s{RA+1}, s{RA+1}, 0xffff
    s_mov_b32 s{RA+2}, 16384
    s_mov_b32 s{RA+3}, 0x20000
    s_add_u32 s{RB}, s8, s{sT3}
    s_addc_u32 s{RB+1}, s9, 0
    s_and_b32 s{RB+1}, s{RB+1}, 0xffff
    s_sub_u32 s{RB+2}, 65536, s{sT2}
    s_mov_b32 s{RB+3}, 0x20000
    """)
    for idx in range(32):
        isK = idx < 16
        i = idx & 15
        if idx >= depth:
            a(f"s_waitcnt vmcnt({depth-1})")
            done = idx - depth
            if trig and done == trig - 1:
                a.signal(vFL2, F_H, vONE2)
            if done == 15:
                a("s_mov_b64 exec, 1")
                a(f"v_mov_b32 v{vU0}, s{sW}")
                a(f"v_lshlrev_b32 v{vU0}, 2, v{vU0}")
                a(f"v_add_u32 v{vU0}, v{vFL2}, v{vU0}")
                a(f"ds_write_b32 v{vU0}, v{vONE2} offset:{F_K}")
                a.exec_all()
                a.stamp(2)
        if isK:
            a(f"s_add_u32 s{sT0}, s{sROTK}, {i}")
            a(f"s_and_b32 s{sT0}, s{sT0}, 15")
            a(f"s_lshl_b32 s{sT0}, s{sT0}, 10")
            a(f"s_add_u32 m0, s{sX1}, {1024*i}")
            x = ((2 * i) & 15) << 4
            if x:
                a(f"v_xor_b32 v{vTM}, {x}, v{vKO}")
                a(f"buffer_load_dwordx4 v{vTM}, s[{RA}:{RA+3}], s{sT0} offen{NT} lds")
            else:
                a("s_nop 0")
                a(f"buffer_load_dwordx4 v{vKO}, s[{RA}:{RA+3}], s{sT0} offen{NT} lds")
        else:
            a(f"s_add_u32 s{sT0}, s{sROTV}, {i}")
            a(f"s_and_b32 s{sT0}, s{sT0}, 15")
            a(f"s_add_u32 m0, s{sX2}, {1024*i}")
            a(f"s_lshl_b32 s{sT0}, s{sT0}, 12")
            a(f"buffer_load_dwordx4 v{vVO}, s[{RB}:{RB+3}], s{sT0} offen{NT} lds")
        if idx == depth - 1:
            a("s_barrier")
            a.stamp(1)
            for r in range(64):
                a(f"v_mov_b32 v{vB+r}, 0")
            a(f"v_lshrrev_b32 v{vKG2}, 4, v{vL}")
            a(f"v_and_b32 v{vJ2}, 15, v{vL}")
            a.tr_addrs(vTRL, f"s{sX2}", vL, vU0, vU1, vU2)
            for r in range(4):
                a(f"v_mov_b32 v{vACC2+r}, 0")
    a.signal(vFL2, F_V, vONE2)
    a.stamp(3)
    a.srd(WS, 18, 19, WS_SIZE)
    a(f"""
    v_and_b32 v{vU0}, 1, v{vJ2}
    v_lshlrev_b32 v{vU0}, 4, v{vU0}
    v_lshrrev_b32 v{vU1}, 1, v{vJ2}
    v_add_u32 v{vU0}, v{vU0}, v{vU1}
    v_lshlrev_b32 v{vU0}, 11, v{vU0}
    v_lshlrev_b32 v{vU1}, 4, v{vKG2}
    v_add_u32 v{vHS}, v{vU0}, v{vU1}
    s_lshl_b32 s{sX3}, s{sG}, 16
    s_lshl_b32 s{sT0}, s{sW}, 13
    s_add_u32 s{sX3}, s{sX3}, s{sT0}
    s_lshl_b32 s{sT0}, s{sC}, 6
    s_add_u32 s{sX3}, s{sX3}, s{sT0}
    s_add_u32 s{sX3}, s{sX3}, {WS_HA}
    """)
    vPA, vMA = 160, 168
    a(f"""
    v_lshrrev_b32 v{vU0}, 1, v{vKG2}
    v_add_u32 v{vU0}, s{sROTV}, v{vU0}
    v_and_b32 v{vU1}, 1, v{vKG2}
    v_lshlrev_b32 v{vU1}, 4, v{vU1}
    v_and_b32 v{vU2}, 1, v{vJ2}
    v_lshlrev_b32 v{vTM}, 9, v{vU2}
    v_add_u32 v{vU1}, v{vU1}, v{vTM}
    v_add_u32 v{vU1}, {PL}, v{vU1}
    v_lshlrev_b32 v{vU2}, 3, v{vU2}
    v_add_u32 v{vU2}, {SL}, v{vU2}
    """)
    for k in range(8):
        a(f"v_add_u32 v{vTM}, {2*k}, v{vU0}")
        a(f"v_and_b32 v{vTM}, 15, v{vTM}")
        a(f"v_lshlrev_b32 v{vPA+k}, 5, v{vTM}")
        a(f"v_add_u32 v{vPA+k}, v{vPA+k}, v{vU1}")
        a(f"v_lshrrev_b32 v{vTM}, 2, v{vTM}")
        a(f"v_lshlrev_b32 v{vTM}, 4, v{vTM}")
        a(f"v_add_u32 v{vMA+k}, v{vTM}, v{vU2}")
    a.spin_lds(vFL2, F_P, 4, vTM)
    a.stamp(4)
    vM4 = 176
    for w_ in range(4):
        a(f"ds_read_b32 v{vM4+w_}, v{vU2} offset:{16*w_}")
    for k in range(8):
        a(f"ds_read_b32 v{vMM+k}, v{vMA+k}")
    a("s_waitcnt lgkmcnt(8)")
    a(f"v_max3_f32 v{vM4}, v{vM4}, v{vM4+1}, v{vM4+2}")
    a(f"v_max_f32 v{vM4}, v{vM4}, v{vM4+3}")
    for k in range(8):
        a(f"ds_read_b128 v[{vPP+4*k}:{vPP+4*k+3}], v{vPA+k}")
        if k == 3:
            a("s_waitcnt lgkmcnt(4)")
            for kk in range(8):
                a(f"v_sub_f32 v{vMM+kk}, v{vMM+kk}, v{vM4}")
            for kk in range(8):
                a(f"v_exp_f32 v{vMM+kk}, v{vMM+kk}")
    a("s_waitcnt lgkmcnt(0)")
    for k in range(8):
        for r in range(4):
            a(f"v_mul_f32 v{vPP+4*k+r}, v{vMM+k}, v{vPP+4*k+r}")
    for t in range(4):
        a.exec_pat((3 << (2 * t)) * 0x00010001)
        for J in range(4):
            for e in range(4):
                k = 2 * J + (e >> 1)
                p0 = vPP + 4 * k + 2 * (e & 1)
                a(f"v_cvt_pk_bf16_f32 v{vB+16*t+4*J+e}, v{p0}, v{p0+1}")
    a.exec_all()
    a.stamp(5)
    for J in range(4):
        a(f"s_waitcnt vmcnt({12-4*J})")
        if J == 3:
            a.stamp(6)
        s = vAF + 16 * (J & 1)
        for t in range(4):
            for hf in range(2):
                r = s + 4 * t + 2 * hf
                a(f"ds_read_b64_tr_b16 v[{r}:{r+1}], v{vTRL+t} offset:{1024*(4*J+2*hf)}")
        for t in range(4):
            a(f"s_waitcnt lgkmcnt({6-2*t})")
            a(f"v_mfma_f32_16x16x32_bf16 v[{vACC2}:{vACC2+3}], v[{s+4*t}:{s+4*t+3}], v[{vB+16*t+4*J}:{vB+16*t+4*J+3}], v[{vACC2}:{vACC2+3}]")
    a.exec_pat(0x00FF00FF)
    a("s_nop 7")
    a(f"buffer_store_dwordx4 v[{vACC2}:{vACC2+3}], v{vHS}, s[{WS}:{WS+3}], s{sX3} offen sc1")
    a.exec_all()
    a.signal(vFL2, F_D, vONE2)
    a.stamp(7)
    if stamps:
        a("L_dump:")
        from stamps import dump
        a("s_waitcnt lgkmcnt(0)")
        a.srd(WS, 18, 19, 0x40000000)
        dump(a, 13, 8, wave_sreg=f"s{sWAVE}", wg_sreg=f"s{sB}", ws_srd=WS, vt=(200,))
    a("L_end:")
    a("s_endpgm")
    return a.text()


if __name__ == "__main__":
    import argparse
    ap = argparse.ArgumentParser()
    ap.add_argument("-o", default="k.s")
    ap.add_argument("--stamps", action="store_true")
    ap.add_argument("--diag", action="store_true")
    ap.add_argument("--depth", type=int, default=8)
    ap.add_argument("--trig", type=int, default=8)
    ap.add_argument("--rotk", default="2*c+4*w")
    ap.add_argument("--rotv", default="c+4*w")
    ap.add_argument("--prio", type=int, default=2)
    args = ap.parse_args()
    body = gen(depth=args.depth, stamps=args.stamps, diag=args.diag, trig=args.trig, rotk=args.rotk, rotv=args.rotv, prio_s=args.prio)
    open(args.o, "w").write(wrap(body, 256, 512, LDS_BYTES, vgpr=216 if args.stamps else 184, sgpr=102))
```

```python
import sys
from common import *

KL, VL, WL = 0, 65536, 131072
QL = 147456
PL = QL + 1024
SL = PL + 1024
OL = SL + 64
FL = OL + 128
LDS_BYTES = 150528
F_Q, F_P, F_V, F_H, F_D, F_E, F_K = 0, 4, 8, 12, 16, 20, 24
WS_EP, WS_QG, WS_RD, WS_HA, WS_HB, WS_SIZE = 0, 0x1000, 0x22000, 0x40000, 0x140000, 0x160000
SCALE_LOG2E = 0x3DB8AA3B
SPIN_LDS = 1 << 16
SPIN_MEM = 1 << 14

sB, sWAVE = 2, 3
sG, sC, sW, sTAG = 20, 21, 22, 23
sT0, sT1, sT2, sT3 = 24, 25, 26, 27
WS, RA, RB, RC, RO = 28, 32, 36, 40, 44
sCNT, sVAL = 48, 49
sM1, sM2, sM3 = 50, 52, 54
sROTK, sROTV = 56, 57
sX0, sX1, sX2, sX3 = 58, 59, 60, 61
sEX = 62


class G(Asm):
    def __init__(self, stamps=False):
        super().__init__()
        self.n = 0
        self.stamps = stamps

    def lab(self, base):
        self.n += 1
        return f"L_{base}_{self.n}"

    def stamp(self, k):
        if self.stamps:
            self(f"s_memrealtime s[{64+2*k}:{65+2*k}]")

    def srd(self, r, lo, hi, nrec):
        self(f"s_mov_b32 s{r}, s{lo}")
        self(f"s_and_b32 s{r+1}, s{hi}, 0xffff")
        self(f"s_mov_b32 s{r+2}, {nrec}")
        self(f"s_mov_b32 s{r+3}, 0x20000")

    def exec_all(self):
        self("s_mov_b64 exec, -1")

    def exec_pat(self, lo, hi=None):
        hi = lo if hi is None else hi
        self(f"s_mov_b32 exec_lo, {lo:#x}")
        self(f"s_mov_b32 exec_hi, {hi:#x}")

    def signal(self, vaddr, off, vone):
        self("s_mov_b64 exec, 1")
        self(f"ds_add_u32 v{vaddr}, v{vone} offset:{off}")
        self.exec_all()

    def spin_lds(self, vaddr, off, target, vt):
        L, D = self.lab("spin"), self.lab("spun")
        self(f"s_mov_b32 s{sCNT}, 0")
        self(f"{L}:")
        self(f"ds_read_b32 v{vt}, v{vaddr} offset:{off}")
        self("s_waitcnt lgkmcnt(0)")
        self(f"v_readfirstlane_b32 s{sVAL}, v{vt}")
        self(f"s_cmp_ge_u32 s{sVAL}, {target}")
        self(f"s_cbranch_scc1 {D}")
        self(f"s_add_u32 s{sCNT}, s{sCNT}, 1")
        self(f"s_cmp_lt_u32 s{sCNT}, {SPIN_LDS}")
        self("s_sleep 1")
        self(f"s_cbranch_scc1 {L}")
        self(f"{D}:")

    def tr_addrs(self, dst, base_sexpr, vl, t0, t1, t2):
        self(f"v_lshrrev_b32 v{t0}, 2, v{vl}")
        self(f"v_and_b32 v{t1}, 7, v{t0}")
        self(f"v_lshrrev_b32 v{t0}, 5, v{vl}")
        self(f"v_lshlrev_b32 v{t0}, 10, v{t0}")
        self(f"v_lshlrev_b32 v{t2}, 7, v{t1}")
        self(f"v_add_u32 v{t0}, v{t0}, v{t2}")
        self(f"v_and_b32 v{t2}, 1, v{vl}")
        self(f"v_lshlrev_b32 v{t2}, 3, v{t2}")
        self(f"v_add_u32 v{t0}, v{t0}, v{t2}")
        self(f"v_add_u32 v{t0}, {base_sexpr}, v{t0}")
        self(f"v_and_b32 v{t1}, 6, v{t1}")
        self(f"v_bfe_u32 v{t2}, v{vl}, 1, 1")
        self(f"v_or_b32 v{t1}, v{t1}, v{t2}")
        for t in range(4):
            self(f"v_xor_b32 v{t2}, {2*t}, v{t1}")
            self(f"v_lshlrev_b32 v{t2}, 4, v{t2}")
            self(f"v_add_u32 v{dst+t}, v{t0}, v{t2}")


def gen(depth=8, stamps=False, diag=False, backoff=4, early_b0=True, depthv=None, pflag='sc1', nopoison=False, trig=8, rotk="2*c+4*w", rotv="c+4*w", prio_s=2, nt="nt"):
    a = G(stamps)
    NT = (" " + nt) if nt else ""
    vL = 1
    a(f"""
    s_cmp_ge_u32 s{sB}, 256
    s_cbranch_scc1 L_end
    s_load_dwordx16 s[4:19], s[0:1], 0
    """)
    a.stamp(0)
    if diag:
        a("s_memrealtime s[90:91]")
        a("s_memtime s[92:93]")
    if stamps:
        for r in range(66, 96):
            a(f"s_mov_b32 s{r}, 0")
    a(f"""
    v_lshrrev_b32 v2, 6, v0
    v_and_b32 v{vL}, 63, v0
    v_readfirstlane_b32 s{sWAVE}, v2
    s_and_b32 s{sG}, s{sB}, 7
    s_lshr_b32 s{sC}, s{sB}, 3
    s_and_b32 s{sW}, s{sWAVE}, 3
    s_cmp_ge_u32 s{sWAVE}, 4
    s_cbranch_scc1 L_loader
    """)

    def rot(expr, dst):
        terms = expr.split("+")
        first = True
        for t in terms:
            if "*" in t:
                k, v = t.split("*")
            else:
                k, v = "1", t
            src = {"c": sC, "w": sW, "g": sG}[v]
            a(f"s_mul_i32 s{sT0}, s{src}, {k}")
            if first:
                a(f"s_mov_b32 s{dst}, s{sT0}"); first = False
            else:
                a(f"s_add_u32 s{dst}, s{dst}, s{sT0}")
        a(f"s_and_b32 s{dst}, s{dst}, 15")

    if prio_s:
        a(f"s_setprio {prio_s}")
    vKG, vJ, vFL, vONE = 2, 3, 4, 5
    vA0, vT0, vT1, vT2 = 6, 7, 8, 9
    vTR = 10
    vX = 16
    vBF = 32
    vACC = 96
    vPO = 112
    a(f"""
    v_lshrrev_b32 v{vKG}, 4, v{vL}
    v_and_b32 v{vJ}, 15, v{vL}
    v_mov_b32 v{vFL}, {FL}
    v_mov_b32 v{vONE}, 1
    s_cmp_lg_u32 s{sW}, 0
    s_cbranch_scc1 L_s_notq
    """)
    a(f"""
    v_lshrrev_b32 v{vT0}, 3, v{vL}
    v_and_b32 v{vT1}, 6, v{vT0}
    v_and_b32 v{vT2}, 7, v{vL}
    v_xor_b32 v{vT1}, v{vT1}, v{vT2}
    v_lshlrev_b32 v{vT1}, 4, v{vT1}
    v_lshlrev_b32 v{vT0}, 13, v{vT0}
    v_add_u32 v{vA0}, v{vT0}, v{vT1}
    s_lshr_b32 s{sX0}, s{sC}, 3
    s_and_b32 s{sX1}, s{sC}, 7
    s_mul_i32 s{sT0}, s{sX0}, {112*8192}
    s_lshl_b32 s{sT1}, s{sG}, 10
    s_add_u32 s{sT0}, s{sT0}, s{sT1}
    s_lshl_b32 s{sT1}, s{sX1}, 7
    s_add_u32 s{sT0}, s{sT0}, s{sT1}
    s_mul_i32 s{sT2}, s{sX0}, 224
    v_lshlrev_b32 v{vT2}, 3, v{vKG}
    v_add_u32 v{vT2}, s{sT2}, v{vT2}
    s_mov_b32 m0, {WL}
    s_mov_b32 s{sT3}, 0
    s_waitcnt lgkmcnt(0)
    s_add_u32 s{RA}, s10, s{sT0}
    s_addc_u32 s{RA+1}, s11, 0
    s_and_b32 s{RA+1}, s{RA+1}, 0xffff
    s_mov_b32 s{RA+2}, {111*8192+128}
    s_mov_b32 s{RA+3}, 0x20000
    """)
    a.srd(RB, 4, 5, 896)
    for jj in range(7):
        a(f"buffer_load_dwordx2 v[{vX+2*jj}:{vX+2*jj+1}], v{vT2}, s[{RB}:{RB+3}], 0 offen offset:{32*jj}")
    for ii in range(14):
        a(f"buffer_load_dwordx4 v{vA0}, s[{RA}:{RA+3}], s{sT3} offen{NT} lds")
        if ii < 13:
            a(f"s_add_u32 m0, m0, 1024")
            a(f"s_add_u32 s{sT3}, s{sT3}, 65536")
    a.stamp(13)
    a("s_barrier")
    a.stamp(1)
    a(f"s_load_dword s{sTAG}, s[18:19], {WS_EP}")
    a.srd(WS, 18, 19, WS_SIZE)
    a(f"s_mov_b32 s{sT3}, {WL}")
    a.tr_addrs(vTR, f"s{sT3}", vL, vT0, vT1, vT2)
    for r in (vX + 14, vX + 15):
        a(f"v_mov_b32 v{r}, 0")
    for t in range(4):
        a(f"v_mov_b32 v{vBF+16*t+14}, 0")
        a(f"v_mov_b32 v{vBF+16*t+15}, 0")
    a("s_waitcnt vmcnt(0)")
    a.stamp(2)

    def q_reads(t):
        for jj in range(7):
            a(f"ds_read_b64_tr_b16 v[{vBF+16*t+2*jj}:{vBF+16*t+2*jj+1}], v{vTR+t} offset:{2048*jj}")

    def q_mfma(t):
        for J in range(4):
            c = "0" if J == 0 else f"v[{vACC+4*t}:{vACC+4*t+3}]"
            a(f"v_mfma_f32_16x16x32_bf16 v[{vACC+4*t}:{vACC+4*t+3}], v[{vX+4*J}:{vX+4*J+3}], v[{vBF+16*t+4*J}:{vBF+16*t+4*J+3}], {c}")
    q_reads(0); q_reads(1)
    a("s_waitcnt lgkmcnt(7)"); q_mfma(0)
    q_reads(2)
    a("s_waitcnt lgkmcnt(7)"); q_mfma(1)
    q_reads(3)
    a("s_waitcnt lgkmcnt(7)"); q_mfma(2)
    a("s_waitcnt lgkmcnt(0)"); q_mfma(3)
    a(f"""
    s_mov_b32 s{sM1}, 0xffff0000
    s_mov_b32 s{sM1+1}, 0
    s_mov_b32 s{sM2}, 0
    s_mov_b32 s{sM2+1}, 0xffff
    s_mov_b32 s{sM3}, 0
    s_mov_b32 s{sM3+1}, 0xffff0000
    s_mul_i32 s{sTAG}, s{sTAG}, 0x9E3779B1
    s_add_u32 s{sTAG}, s{sTAG}, 0x7F4A7C15
    s_lshl_b32 s{sT0}, s{sG}, 14
    s_lshl_b32 s{sT1}, s{sX0}, 12
    s_add_u32 s{sT0}, s{sT0}, s{sT1}
    s_lshl_b32 s{sT1}, s{sX1}, 9
    s_add_u32 s{sT0}, s{sT0}, s{sT1}
    s_add_u32 s{sT0}, s{sT0}, {WS_QG}
    v_lshlrev_b32 v{vA0}, 3, v{vL}
    s_nop 4
    """)
    a(f"""
    v_cndmask_b32 v8, v{vACC}, v{vACC+4}, s[{sM1}:{sM1+1}]
    v_cndmask_b32 v8, v8, v{vACC+8}, s[{sM2}:{sM2+1}]
    v_cndmask_b32 v8, v8, v{vACC+12}, s[{sM3}:{sM3+1}]
    v_mov_b32 v9, s{sTAG}
    buffer_store_dwordx2 v[8:9], v{vA0}, s[{WS}:{WS+3}], s{sT0} offen sc1
    """)
    a.stamp(3)
    a("s_branch L_s_common")
    a("L_s_notq:")
    a(f"""
    s_cmp_lg_u32 s{sW}, 1
    s_cbranch_scc1 L_s_noinit
    v_lshlrev_b32 v{vT0}, 2, v{vL}
    v_add_u32 v{vT0}, {FL}, v{vT0}
    v_mov_b32 v{vT1}, 0
    s_mov_b64 exec, 0xffff
    ds_write_b32 v{vT0}, v{vT1}
    s_mov_b64 exec, -1
    L_s_noinit:
    s_waitcnt lgkmcnt(0)
    s_load_dword s{sTAG}, s[18:19], {WS_EP}
    """)
    a.srd(WS, 18, 19, WS_SIZE)
    a(f"""
    s_cmp_eq_u32 s{sW}, 1
    s_cbranch_scc1 L_s_poison
    s_barrier
    s_waitcnt lgkmcnt(0)
    s_mul_i32 s{sTAG}, s{sTAG}, 0x9E3779B1
    s_add_u32 s{sTAG}, s{sTAG}, 0x7F4A7C15
    s_branch L_s_common
    L_s_poison:
    """)
    for r in range(4):
        a(f"v_mov_b32 v{vPO+r}, -1")
    a(f"""
    v_lshrrev_b32 v{vT0}, 3, v{vL}
    v_and_b32 v{vT1}, 7, v{vL}
    v_lshlrev_b32 v{vT1}, 4, v{vT1}
    v_lshlrev_b32 v{vA0}, 12, v{vT0}
    v_add_u32 v{vA0}, v{vA0}, v{vT1}
    s_lshl_b32 s{sT0}, s{sG}, 17
    s_lshl_b32 s{sT1}, s{sC}, 7
    s_add_u32 s{sT0}, s{sT0}, s{sT1}
    s_add_u32 s{sT0}, s{sT0}, {WS_HA}
    """)
    for i in range(4):
        if not nopoison:
            a(f"buffer_store_dwordx4 v[{vPO}:{vPO+3}], v{vA0}, s[{WS}:{WS+3}], s{sT0} offen {pflag}")
        if i < 3:
            a(f"s_add_u32 s{sT0}, s{sT0}, 32768")
    a(f"""
    v_lshlrev_b32 v{vT0}, 13, v{vT0}
    v_add_u32 v{vT0}, v{vT0}, v{vT1}
    s_and_b32 s{sT2}, s{sC}, 3
    s_lshl_b32 s{sT0}, s{sT2}, 15
    s_lshr_b32 s{sT1}, s{sC}, 2
    s_lshl_b32 s{sT3}, s{sG}, 3
    s_add_u32 s{sT1}, s{sT1}, s{sT3}
    s_lshl_b32 s{sT1}, s{sT1}, 7
    s_add_u32 s{sT0}, s{sT0}, s{sT1}
    s_add_u32 s{sT0}, s{sT0}, {WS_HB}
    s_cmp_eq_u32 s{sT2}, 3
    s_cselect_b32 exec_lo, 0xffff, -1
    s_mov_b32 exec_hi, 0
    {"" if nopoison else f"buffer_store_dwordx4 v[{vPO}:{vPO+3}], v{vT0}, s[{WS}:{WS+3}], s{sT0} offen {pflag}"}
    s_mov_b64 exec, -1
    s_barrier
    s_waitcnt lgkmcnt(0)
    s_mul_i32 s{sTAG}, s{sTAG}, 0x9E3779B1
    s_add_u32 s{sTAG}, s{sTAG}, 0x7F4A7C15
    s_mov_b64 exec, 1
    v_mov_b32 v8, 0
    v_mov_b32 v9, s{sTAG}
    v_mov_b32 v{vA0}, 0
    s_lshl_b32 s{sT0}, s{sG}, 8
    s_lshl_b32 s{sT1}, s{sC}, 3
    s_add_u32 s{sT0}, s{sT0}, s{sT1}
    s_add_u32 s{sT0}, s{sT0}, {WS_RD}
    s_waitcnt vmcnt(0)
    buffer_store_dwordx2 v[8:9], v{vA0}, s[{WS}:{WS+3}], s{sT0} offen sc1
    s_mov_b64 exec, -1
    """)
    a.stamp(3)
    a("L_s_common:")
    vG = 16
    vEV = 32
    vGA, vEA = 10, 11
    rot(rotk, sROTK)
    a(f"s_and_b32 s{sROTK}, s{sROTK}, 14")
    a(f"""
    v_lshlrev_b32 v{vGA}, 4, v{vL}
    s_lshl_b32 s{sX0}, s{sG}, 14
    s_lshl_b32 s{sT0}, s{sW}, 10
    s_add_u32 s{sX0}, s{sX0}, s{sT0}
    s_add_u32 s{sX0}, s{sX0}, {WS_QG}
    s_add_u32 s{sX1}, s{sX0}, 4096
    s_add_u32 s{sX2}, s{sX0}, 8192
    s_add_u32 s{sX3}, s{sX0}, 12288
    """)
    a(f"""
    s_lshr_b32 s{sT0}, s{sB}, 3
    v_and_b32 v{vT0}, 7, v{vL}
    v_lshlrev_b32 v{vT0}, 2, v{vT0}
    v_add_u32 v{vT0}, s{sT0}, v{vT0}
    v_lshlrev_b32 v{vT0}, 3, v{vT0}
    v_lshrrev_b32 v{vT1}, 3, v{vL}
    v_lshlrev_b32 v{vT1}, 8, v{vT1}
    v_add_u32 v{vT0}, v{vT0}, v{vT1}
    v_and_b32 v{vT1}, 31, v{vL}
    v_lshlrev_b32 v{vT1}, 3, v{vT1}
    s_lshl_b32 s{sT0}, s{sG}, 8
    v_add_u32 v{vT1}, s{sT0}, v{vT1}
    s_cmp_eq_u32 s{sW}, 3
    s_cselect_b64 vcc, -1, 0
    v_cndmask_b32 v{vT0}, v{vT1}, v{vT0}, vcc
    v_add_u32 v{vEA}, {WS_RD}, v{vT0}
    s_cmp_lt_u32 s{sB}, 28
    s_cselect_b32 s{sT0}, 1, 0
    s_cmp_eq_u32 s{sW}, 3
    s_cselect_b32 s63, s{sT0}, 0
    """)
    if trig:
        a.spin_lds(vFL, F_H, 4, vT0)
    a.stamp(4)
    LQ, LQD = a.lab("qg"), a.lab("qgd")
    a(f"s_mov_b32 s{sCNT}, 0")
    a(f"{LQ}:")
    for r in range(4):
        a(f"buffer_load_dwordx4 v[{vG+4*r}:{vG+4*r+3}], v{vGA}, s[{WS}:{WS+3}], s{sX0+r} offen sc1")
    a(f"""
    s_waitcnt vmcnt(0)
    v_max3_u32 v{vT0}, v{vG+1}, v{vG+3}, v{vG+5}
    v_min3_u32 v{vT1}, v{vG+1}, v{vG+3}, v{vG+5}
    v_max3_u32 v{vT0}, v{vT0}, v{vG+7}, v{vG+9}
    v_min3_u32 v{vT1}, v{vT1}, v{vG+7}, v{vG+9}
    v_max3_u32 v{vT0}, v{vT0}, v{vG+11}, v{vG+13}
    v_min3_u32 v{vT1}, v{vT1}, v{vG+11}, v{vG+13}
    v_max_u32 v{vT0}, v{vT0}, v{vG+15}
    v_min_u32 v{vT1}, v{vT1}, v{vG+15}
    v_xor_b32 v{vT0}, s{sTAG}, v{vT0}
    v_xor_b32 v{vT1}, s{sTAG}, v{vT1}
    v_or_b32 v{vT0}, v{vT0}, v{vT1}
    v_cmp_ne_u32 vcc, 0, v{vT0}
    s_cbranch_vccz {LQD}
    s_add_u32 s{sCNT}, s{sCNT}, 1
    s_cmp_lt_u32 s{sCNT}, {SPIN_MEM}
    s_sleep {backoff}
    s_cbranch_scc1 {LQ}
    {LQD}:
    v_add_f32 v{vG}, v{vG}, v{vG+4}
    v_add_f32 v{vG+2}, v{vG+2}, v{vG+6}
    v_add_f32 v{vG+8}, v{vG+8}, v{vG+12}
    v_add_f32 v{vG+10}, v{vG+10}, v{vG+14}
    v_add_f32 v{vG}, v{vG}, v{vG+8}
    v_add_f32 v{vG+2}, v{vG+2}, v{vG+10}
    v_cvt_pk_bf16_f32 v{vT0}, v{vG}, v{vG+2}
    v_lshlrev_b32 v{vT1}, 2, v{vL}
    s_lshl_b32 s{sT0}, s{sW}, 8
    s_add_u32 s{sT0}, s{sT0}, {QL}
    v_add_u32 v{vT1}, s{sT0}, v{vT1}
    ds_write_b32 v{vT1}, v{vT0}
    """)
    a.signal(vFL, F_Q, vONE)
    vRD = 146
    LNR = a.lab("nord")
    a(f"s_cmp_eq_u32 s{sW}, 2")
    a(f"s_cselect_b32 s{sEX}, 1, s63")
    a(f"s_cmp_eq_u32 s{sEX}, 0")
    a(f"s_cbranch_scc1 {LNR}")
    a(f"buffer_load_dwordx2 v[{vRD}:{vRD+1}], v{vEA}, s[{WS}:{WS+3}], 0 offen sc1")
    a(f"{LNR}:")
    a(f"v_mov_b32 v148, v{vEA}")
    a.stamp(5)
    vQ = 16
    vK = 48
    vKA = 112
    vD = 120
    vS = 128
    vP = 136
    a(f"""
    v_and_b32 v{vT0}, 1, v{vJ}
    v_lshlrev_b32 v{vT0}, 9, v{vT0}
    v_lshlrev_b32 v{vT1}, 4, v{vKG}
    v_add_u32 v{vT0}, v{vT0}, v{vT1}
    v_add_u32 v{vA0}, {QL}, v{vT0}
    v_xor_b32 v{vT0}, v{vKG}, v{vJ}
    v_lshlrev_b32 v{vT0}, 4, v{vT0}
    v_lshlrev_b32 v{vT1}, 9, v{vJ}
    s_lshl_b32 s{sT0}, s{sW}, 14
    v_add_u32 v{vT1}, s{sT0}, v{vT1}
    """)
    for J in range(8):
        a(f"v_xor_b32 v{vT2}, {J<<6}, v{vT0}")
        a(f"v_add_u32 v{vKA+J}, v{vT1}, v{vT2}")
    a.spin_lds(vFL, F_Q, 4, vT2)
    for J in range(8):
        a(f"ds_read_b128 v[{vQ+4*J}:{vQ+4*J+3}], v{vA0} offset:{64*J}")
    a(f"v_mov_b32 v{vT0}, s{sW}")
    a(f"v_lshlrev_b32 v{vT0}, 2, v{vT0}")
    a(f"v_add_u32 v{vT0}, v{vFL}, v{vT0}")
    a.spin_lds(vT0, F_K, 1, vT2)
    a.stamp(6)
    for tt in range(2):
        for J in range(8):
            a(f"ds_read_b128 v[{vK+32*tt+4*J}:{vK+32*tt+4*J+3}], v{vKA+J} offset:{KL+8192*tt}")
        if tt == 0:
            continue
    a("s_waitcnt lgkmcnt(8)")
    for J in range(8):
        c = "0" if J == 0 else f"v[{vD}:{vD+3}]"
        a(f"v_mfma_f32_16x16x32_bf16 v[{vD}:{vD+3}], v[{vK+4*J}:{vK+4*J+3}], v[{vQ+4*J}:{vQ+4*J+3}], {c}")
    a("s_waitcnt lgkmcnt(0)")
    for J in range(8):
        c = "0" if J == 0 else f"v[{vD+4}:{vD+7}]"
        a(f"v_mfma_f32_16x16x32_bf16 v[{vD+4}:{vD+7}], v[{vK+32+4*J}:{vK+32+4*J+3}], v[{vQ+4*J}:{vQ+4*J+3}], {c}")
    vPA0, vPA1 = 10, 11
    a(f"""
    v_lshlrev_b32 v{vT0}, 1, v{vKG}
    v_add_u32 v{vT0}, s{sROTK}, v{vT0}
    v_add_u32 v{vT1}, 8, v{vT0}
    v_and_b32 v{vT0}, 15, v{vT0}
    v_and_b32 v{vT1}, 15, v{vT1}
    v_lshlrev_b32 v{vT0}, 3, v{vT0}
    v_lshlrev_b32 v{vT1}, 3, v{vT1}
    v_and_b32 v{vT2}, 1, v{vJ}
    v_lshlrev_b32 v{vT2}, 9, v{vT2}
    s_lshl_b32 s{sT0}, s{sW}, 7
    s_add_u32 s{sT0}, s{sT0}, {PL}
    v_add_u32 v{vT2}, s{sT0}, v{vT2}
    v_add_u32 v{vPA0}, v{vT2}, v{vT0}
    v_add_u32 v{vPA1}, v{vT2}, v{vT1}
    s_mov_b32 s{sT1}, 0xffff0000
    s_mov_b32 s{sT2}, {SCALE_LOG2E:#x}
    s_nop 1
    """)
    for e in range(4):
        a(f"v_cvt_pk_bf16_f32 v{vP+e}, v{vD+2*e}, v{vD+2*e+1}")
    for e in range(4):
        a(f"v_lshlrev_b32 v{vS+2*e}, 16, v{vP+e}")
        a(f"v_and_b32 v{vS+2*e+1}, s{sT1}, v{vP+e}")
    vMX, vSUM = 12, 13
    a(f"""
    v_max3_f32 v{vMX}, v{vS}, v{vS+1}, v{vS+2}
    v_max3_f32 v{vMX}, v{vMX}, v{vS+3}, v{vS+4}
    v_max3_f32 v{vMX}, v{vMX}, v{vS+5}, v{vS+6}
    v_max_f32 v{vMX}, v{vMX}, v{vS+7}
    v_mov_b32 v{vT0}, v{vMX}
    s_nop 1
    v_permlane16_swap_b32 v{vMX}, v{vT0}
    v_max_f32 v{vMX}, v{vMX}, v{vT0}
    v_mov_b32 v{vT0}, v{vMX}
    s_nop 1
    v_permlane32_swap_b32 v{vMX}, v{vT0}
    v_max_f32 v{vMX}, v{vMX}, v{vT0}
    v_mul_f32 v{vMX}, s{sT2}, v{vMX}
    """)
    for e in range(8):
        a(f"v_fma_f32 v{vP+e}, v{vS+e}, s{sT2}, -v{vMX}")
    for e in range(8):
        a(f"v_exp_f32 v{vP+e}, v{vP+e}")
    a(f"""
    s_nop 0
    v_add_f32 v{vT0}, v{vP}, v{vP+1}
    v_add_f32 v{vT1}, v{vP+2}, v{vP+3}
    v_add_f32 v{vT2}, v{vP+4}, v{vP+5}
    v_add_f32 v{vSUM}, v{vP+6}, v{vP+7}
    v_add_f32 v{vT0}, v{vT0}, v{vT1}
    v_add_f32 v{vSUM}, v{vSUM}, v{vT2}
    v_add_f32 v{vSUM}, v{vSUM}, v{vT0}
    """)
    a.exec_pat(0x00030003)
    a(f"ds_write_b128 v{vPA0}, v[{vP}:{vP+3}]")
    a(f"ds_write_b128 v{vPA1}, v[{vP+4}:{vP+7}]")
    a.exec_all()
    a(f"""
    v_mov_b32 v{vT0}, v{vSUM}
    s_nop 1
    v_permlane16_swap_b32 v{vSUM}, v{vT0}
    v_add_f32 v{vSUM}, v{vSUM}, v{vT0}
    v_mov_b32 v{vT0}, v{vSUM}
    s_nop 1
    v_permlane32_swap_b32 v{vSUM}, v{vT0}
    v_add_f32 v{vSUM}, v{vSUM}, v{vT0}
    v_lshlrev_b32 v{vT0}, 3, v{vL}
    s_lshl_b32 s{sT0}, s{sW}, 4
    s_add_u32 s{sT0}, s{sT0}, {SL}
    v_add_u32 v{vT0}, s{sT0}, v{vT0}
    s_mov_b64 exec, 3
    ds_write_b64 v{vT0}, v[{vMX}:{vMX+1}]
    s_mov_b64 exec, -1
    """)
    a.signal(vFL, F_P, vONE)
    a.stamp(7)
    LNS, LR, LRD = a.lab("nordc"), a.lab("rd"), a.lab("rdd")
    a(f"s_cmp_eq_u32 s{sEX}, 0")
    a(f"s_cbranch_scc1 {LNS}")
    a(f"s_mov_b32 s{sCNT}, 0")
    a(f"{LR}:")
    a(f"""
    s_waitcnt vmcnt(0)
    v_cmp_ne_u32 vcc, s{sTAG}, v{vRD+1}
    s_cbranch_vccz {LRD}
    s_add_u32 s{sCNT}, s{sCNT}, 1
    s_cmp_lt_u32 s{sCNT}, {SPIN_MEM}
    s_cbranch_scc0 {LRD}
    s_sleep {backoff}
    buffer_load_dwordx2 v[{vRD}:{vRD+1}], v148, s[{WS}:{WS+3}], 0 offen sc1
    s_branch {LR}
    {LRD}:
    s_cmp_lg_u32 s{sW}, 2
    s_cbranch_scc1 {LNS}
    """)
    a.signal(vFL, F_E, vONE)
    a(f"{LNS}:")
    vSA, vO0, vO1, vWA0, vWA1, vHA, vOS, vOB, vHB = 10, 11, 14, 15, 16, 17, 18, 19, 20
    vST = 22
    vFA, vFB = 26, 27
    a(f"""
    v_lshlrev_b32 v{vT0}, 1, v{vKG}
    v_xor_b32 v{vT0}, v{vT0}, v{vJ}
    v_lshlrev_b32 v{vT0}, 4, v{vT0}
    v_mul_u32_u24 v{vT1}, 896, v{vKG}
    v_add_u32 v{vO0}, v{vT0}, v{vT1}
    v_xor_b32 v{vT0}, 128, v{vT0}
    v_add_u32 v{vO1}, v{vT0}, v{vT1}
    s_lshl_b32 s{sT0}, s{sG}, 9
    s_lshr_b32 s{sT1}, s{sC}, 2
    s_lshl_b32 s{sT1}, s{sT1}, 6
    s_add_u32 s{sT0}, s{sT0}, s{sT1}
    s_mul_i32 s{sT0}, s{sT0}, 896
    s_and_b32 s{sT1}, s{sC}, 3
    s_lshl_b32 s{sT1}, s{sT1}, 8
    s_add_u32 s{sT0}, s{sT0}, s{sT1}
    s_add_u32 s{RC}, s12, s{sT0}
    s_addc_u32 s{RC+1}, s13, 0
    s_and_b32 s{RC+1}, s{RC+1}, 0xffff
    s_sub_u32 s{RC+2}, 3670016, s{sT0}
    s_mov_b32 s{RC+3}, 0x20000
    """)
    a(f"""
    v_lshrrev_b32 v{vT0}, 2, v{vL}
    v_lshlrev_b32 v{vT1}, 8, v{vT0}
    v_and_b32 v{vT0}, 7, v{vT0}
    v_lshlrev_b32 v{vT0}, 1, v{vT0}
    v_bfe_u32 v{vT2}, v{vL}, 1, 1
    v_xor_b32 v{vT0}, v{vT0}, v{vT2}
    v_and_b32 v{vT2}, 1, v{vL}
    v_lshlrev_b32 v{vT2}, 3, v{vT2}
    v_add_u32 v{vT1}, v{vT1}, v{vT2}
    v_add_u32 v{vT1}, {WL}, v{vT1}
    s_lshl_b32 s{sT0}, s{sW}, 2
    v_xor_b32 v{vT2}, s{sT0}, v{vT0}
    v_lshlrev_b32 v{vT2}, 4, v{vT2}
    v_add_u32 v{vWA0}, v{vT1}, v{vT2}
    s_add_u32 s{sT0}, s{sT0}, 2
    v_xor_b32 v{vT2}, s{sT0}, v{vT0}
    v_lshlrev_b32 v{vT2}, 4, v{vT2}
    v_add_u32 v{vWA1}, v{vT1}, v{vT2}
    v_lshrrev_b32 v{vT0}, 2, v{vL}
    v_lshlrev_b32 v{vT0}, 7, v{vT0}
    v_add_u32 v{vSA}, 64, v{vT0}
    v_and_b32 v{vT1}, 3, v{vL}
    v_lshlrev_b32 v{vT1}, 4, v{vT1}
    v_add_u32 v{vHA}, v{vT0}, v{vT1}
    v_and_b32 v{vT0}, 3, v{vL}
    v_lshlrev_b32 v{vT0}, 2, v{vT0}
    v_add_u32 v{vT0}, v{vT0}, v{vKG}
    v_lshlrev_b32 v{vT0}, 1, v{vT0}
    s_lshl_b32 s{sT0}, s{sW}, 5
    s_add_u32 s{sT0}, s{sT0}, {OL}
    v_add_u32 v{vOS}, s{sT0}, v{vT0}
    v_lshlrev_b32 v{vT0}, 3, v{vKG}
    v_add_u32 v{vOB}, {OL}, v{vT0}
    v_and_b32 v{vT0}, 1, v{vJ}
    v_lshlrev_b32 v{vT0}, 6, v{vT0}
    v_lshlrev_b32 v{vT1}, 4, v{vKG}
    v_add_u32 v{vHB}, v{vT0}, v{vT1}
    s_lshl_b32 s{sX1}, s{sG}, 17
    s_lshr_b32 s{sT0}, s{sC}, 2
    s_lshl_b32 s{sT0}, s{sT0}, 2
    s_add_u32 s{sT0}, s{sT0}, s{sW}
    s_lshl_b32 s{sT0}, s{sT0}, 12
    s_add_u32 s{sX1}, s{sX1}, s{sT0}
    s_add_u32 s{sX1}, s{sX1}, {WS_HA}
    s_and_b32 s{sT0}, s{sC}, 3
    s_lshl_b32 s{sT0}, s{sT0}, 2
    s_add_u32 s{sX3}, s{sT0}, s{sW}
    s_lshl_b32 s{sX2}, s{sX3}, 13
    s_lshr_b32 s{sT0}, s{sC}, 2
    s_lshl_b32 s{sT1}, s{sG}, 3
    s_add_u32 s{sT0}, s{sT0}, s{sT1}
    s_lshl_b32 s{sT0}, s{sT0}, 7
    s_add_u32 s{sX2}, s{sX2}, s{sT0}
    s_add_u32 s{sX2}, s{sX2}, {WS_HB}
    """)
    a.spin_lds(vFL, F_V, 4, vT2)
    a.stamp(8)
    a(f"s_lshl_b32 s{sT0}, s{sW}, 12")
    a(f"s_add_u32 s{sT0}, s{sT0}, {WL}")
    a(f"s_mov_b32 m0, s{sT0}")
    a(f"s_mul_i32 s{sT1}, s{sW}, {16*896}")
    for u in range(4):
        a(f"buffer_load_dwordx4 v{vO1 if u & 1 else vO0}, s[{RC}:{RC+3}], s{sT1} offen{NT} lds")
        if u < 3:
            a("s_add_u32 m0, m0, 1024")
            a(f"s_add_u32 s{sT1}, s{sT1}, {4*896}")
    a.spin_lds(vFL, F_E, 1, vT2)
    a.spin_lds(vFL, F_D, 4, vT2)
    a.stamp(9)
    vH = 28
    vWF = 36
    vOF = 52
    vOD = 60

    def ha_loads():
        a(f"buffer_load_dwordx2 v[{vST}:{vST+1}], v{vSA}, s[{WS}:{WS+3}], s{sX1} offen sc1")
        a(f"buffer_load_dwordx2 v[{vST+2}:{vST+3}], v{vSA}, s[{WS}:{WS+3}], s{sX1} offen offset:2048 sc1")
        a(f"buffer_load_dwordx4 v[{vH}:{vH+3}], v{vHA}, s[{WS}:{WS+3}], s{sX1} offen sc1")
        a(f"buffer_load_dwordx4 v[{vH+4}:{vH+7}], v{vHA}, s[{WS}:{WS+3}], s{sX1} offen offset:2048 sc1")
    ha_loads()
    a("s_waitcnt vmcnt(4)")
    a.stamp(14)
    a("s_barrier")
    a.stamp(15)
    for t, va in ((0, vWA0), (1, vWA1)):
        for J in range(2):
            for hf in range(2):
                r = vWF + 8 * t + 4 * J + 2 * hf
                a(f"ds_read_b64_tr_b16 v[{r}:{r+1}], v{va} offset:{8192*J+4096*hf}")
    LH, LHD = a.lab("ha"), a.lab("had")
    a(f"s_mov_b32 s{sCNT}, 0")
    a(f"{LH}:")
    a(f"""
    s_waitcnt vmcnt(0)
    v_max3_u32 v{vT0}, v{vH}, v{vH+1}, v{vH+2}
    v_max3_u32 v{vT1}, v{vH+3}, v{vH+4}, v{vH+5}
    v_max3_u32 v{vT2}, v{vH+6}, v{vH+7}, v{vST}
    v_max3_u32 v{vT0}, v{vT0}, v{vST+1}, v{vST+2}
    v_max3_u32 v{vT1}, v{vT1}, v{vT2}, v{vST+3}
    v_max_u32 v{vT0}, v{vT0}, v{vT1}
    v_cmp_eq_u32 vcc, -1, v{vT0}
    s_cbranch_vccz {LHD}
    s_add_u32 s{sCNT}, s{sCNT}, 1
    s_cmp_lt_u32 s{sCNT}, {SPIN_MEM}
    s_cbranch_scc0 {LHD}
    """)
    ha_loads()
    a(f"s_branch {LH}")
    a(f"{LHD}:")
    a.stamp(10)
    DPP = "row_mask:0xf bank_mask:0xf"
    a(f"""
    v_max_f32 v{vT0}, v{vST}, v{vST+2}
    s_nop 1
    v_max_f32_dpp v{vT0}, v{vT0}, v{vT0} row_ror:4 {DPP}
    s_nop 1
    v_max_f32_dpp v{vT0}, v{vT0}, v{vT0} row_ror:8 {DPP}
    v_mov_b32 v{vT1}, v{vT0}
    s_nop 1
    v_permlane16_swap_b32 v{vT0}, v{vT1}
    v_max_f32 v{vT0}, v{vT0}, v{vT1}
    v_mov_b32 v{vT1}, v{vT0}
    s_nop 1
    v_permlane32_swap_b32 v{vT0}, v{vT1}
    v_max_f32 v{vT0}, v{vT0}, v{vT1}
    v_sub_f32 v{vFA}, v{vST}, v{vT0}
    v_sub_f32 v{vFB}, v{vST+2}, v{vT0}
    v_exp_f32 v{vFA}, v{vFA}
    v_exp_f32 v{vFB}, v{vFB}
    s_nop 0
    v_mul_f32 v{vT0}, v{vFA}, v{vST+1}
    v_fmac_f32 v{vT0}, v{vFB}, v{vST+3}
    """)
    for r in range(4):
        a(f"v_mul_f32 v{vH+r}, v{vFA}, v{vH+r}")
    a(f"v_add_f32_dpp v{vT0}, v{vT0}, v{vT0} row_ror:4 {DPP}")
    for r in range(4):
        a(f"v_fmac_f32 v{vH+r}, v{vFB}, v{vH+4+r}")
    a(f"""
    v_add_f32_dpp v{vT0}, v{vT0}, v{vT0} row_ror:8 {DPP}
    v_permlane16_swap_b32 v{vH}, v{vH+1}
    v_mov_b32 v{vT1}, v{vT0}
    v_permlane16_swap_b32 v{vH+2}, v{vH+3}
    v_add_f32 v{vH}, v{vH}, v{vH+1}
    v_permlane16_swap_b32 v{vT0}, v{vT1}
    v_add_f32 v{vH+2}, v{vH+2}, v{vH+3}
    v_add_f32 v{vT0}, v{vT0}, v{vT1}
    v_mov_b32 v{vT1}, v{vT0}
    v_permlane32_swap_b32 v{vH}, v{vH+2}
    v_add_f32 v{vH}, v{vH}, v{vH+2}
    v_permlane32_swap_b32 v{vT0}, v{vT1}
    v_add_f32 v{vT0}, v{vT0}, v{vT1}
    v_add_f32_dpp v{vH}, v{vH}, v{vH} row_ror:4 {DPP}
    v_rcp_f32 v{vT0}, v{vT0}
    s_nop 0
    v_add_f32_dpp v{vH}, v{vH}, v{vH} row_ror:8 {DPP}
    s_nop 0
    v_mul_f32 v{vH}, v{vH}, v{vT0}
    v_cvt_pk_bf16_f32 v{vH}, v{vH}, v{vH}
    """)
    a.exec_pat(0x000F000F)
    a(f"ds_write_b16 v{vOS}, v{vH}")
    a.exec_all()
    a(f"""
    s_waitcnt lgkmcnt(0)
    s_barrier
    ds_read2_b64 v[{vOF}:{vOF+3}], v{vOB} offset0:0 offset1:4
    ds_read2_b64 v[{vOF+4}:{vOF+7}], v{vOB} offset0:8 offset1:12
    s_waitcnt lgkmcnt(0)
    """)
    for J in range(2):
        for t in range(2):
            c = "0" if J == 0 else f"v[{vOD+4*t}:{vOD+4*t+3}]"
            a(f"v_mfma_f32_16x16x32_bf16 v[{vOD+4*t}:{vOD+4*t+3}], v[{vWF+8*t+4*J}:{vWF+8*t+4*J+3}], v[{vOF+4*J}:{vOF+4*J+3}], {c}")
    LNB = a.lab("nohb")
    a(f"""
    s_mov_b32 s{sM1}, 0x00020002
    s_mov_b32 s{sM1+1}, 0x00020002
    s_cmp_ge_u32 s{sX3}, 14
    s_cbranch_scc1 {LNB}
    s_nop 4
    """)
    for r in range(4):
        a(f"v_cndmask_b32 v{vOD+r}, v{vOD+r}, v{vOD+4+r}, s[{sM1}:{sM1+1}]")
    a.exec_pat(0x00030003)
    a(f"buffer_store_dwordx4 v[{vOD}:{vOD+3}], v{vHB}, s[{WS}:{WS+3}], s{sX2} offen sc1")
    a.exec_all()
    a(f"{LNB}:")
    a.stamp(11)
    a("s_cmp_eq_u32 s63, 0")
    a("s_cbranch_scc1 L_fin")
    vF = 28
    a(f"s_lshr_b32 s{sX0}, s{sB}, 1")
    a(f"s_lshl_b32 s{sX0}, s{sX0}, 13")
    a(f"s_and_b32 s{sT0}, s{sB}, 1")
    a(f"s_lshl_b32 s{sT0}, s{sT0}, 6")
    a(f"s_add_u32 s{sX0}, s{sX0}, s{sT0}")
    a(f"s_add_u32 s{sX0}, s{sX0}, {WS_HB}")
    a(f"s_add_u32 s{sX1}, s{sX0}, 4096")
    a.srd(RO, 14, 15, 896)
    LF, LFD = a.lab("fb"), a.lab("fbd")
    a(f"s_mov_b32 s{sCNT}, 0")
    a(f"{LF}:")
    for i in range(4):
        a(f"buffer_load_dwordx4 v[{vF+4*i}:{vF+4*i+3}], v{vHA}, s[{WS}:{WS+3}], s{sX0 + (i >> 1)} offen offset:{2048*(i & 1)} sc1")
    a("s_waitcnt vmcnt(0)")
    a(f"""
    v_max3_u32 v{vT0}, v{vF}, v{vF+1}, v{vF+2}
    v_max3_u32 v{vT1}, v{vF+3}, v{vF+4}, v{vF+5}
    v_max3_u32 v{vT2}, v{vF+6}, v{vF+7}, v{vF+8}
    v_max3_u32 v{vT0}, v{vT0}, v{vF+9}, v{vF+10}
    v_max3_u32 v{vT1}, v{vT1}, v{vF+11}, v{vF+12}
    v_max3_u32 v{vT2}, v{vT2}, v{vF+13}, v{vF+14}
    v_max3_u32 v{vT0}, v{vT0}, v{vT1}, v{vF+15}
    v_max_u32 v{vT0}, v{vT0}, v{vT2}
    v_cmp_eq_u32 vcc, -1, v{vT0}
    s_cbranch_vccz {LFD}
    s_add_u32 s{sCNT}, s{sCNT}, 1
    s_cmp_lt_u32 s{sCNT}, {SPIN_MEM}
    s_cbranch_scc1 {LF}
    {LFD}:
    """)
    for r in range(4):
        a(f"v_add_f32 v{vF+r}, v{vF+r}, v{vF+4+r}")
        a(f"v_add_f32 v{vF+8+r}, v{vF+8+r}, v{vF+12+r}")
    for r in range(4):
        a(f"v_add_f32 v{vF+r}, v{vF+r}, v{vF+8+r}")
    a(f"""
    s_nop 0
    v_permlane16_swap_b32 v{vF}, v{vF+1}
    v_permlane16_swap_b32 v{vF+2}, v{vF+3}
    v_add_f32 v{vF}, v{vF}, v{vF+1}
    v_add_f32 v{vF+2}, v{vF+2}, v{vF+3}
    s_nop 1
    v_permlane32_swap_b32 v{vF}, v{vF+2}
    v_add_f32 v{vF}, v{vF}, v{vF+2}
    s_nop 1
    v_add_f32_dpp v{vF}, v{vF}, v{vF} row_ror:4 row_mask:0xf bank_mask:0xf
    s_nop 1
    v_add_f32_dpp v{vF}, v{vF}, v{vF} row_ror:8 row_mask:0xf bank_mask:0xf
    v_cvt_pk_bf16_f32 v{vF}, v{vF}, v{vF}
    v_and_b32 v{vT0}, 3, v{vL}
    v_lshlrev_b32 v{vT0}, 2, v{vT0}
    v_add_u32 v{vT0}, v{vT0}, v{vKG}
    v_lshlrev_b32 v{vT0}, 1, v{vT0}
    s_lshl_b32 s{sT0}, s{sB}, 5
    """)
    a.exec_pat(0x000F000F)
    a(f"buffer_store_short v{vF}, v{vT0}, s[{RO}:{RO+3}], s{sT0} offen")
    a(f"""
    s_cmp_lg_u32 s{sB}, 0
    s_cbranch_scc1 L_fin
    s_mov_b64 exec, 1
    v_mov_b32 v{vT1}, s{sTAG}
    v_mov_b32 v{vT2}, 0
    buffer_store_dword v{vT1}, v{vT2}, s[{WS}:{WS+3}], 0 offen sc1
    """)
    a("L_fin:")
    a.exec_all()
    if diag:
        a(f"""
        s_cmp_lg_u32 s{sW}, 3
        s_cbranch_scc1 L_diag_done
        s_memrealtime s[94:95]
        s_memtime s[96:97]
        s_waitcnt lgkmcnt(0)
        s_mov_b32 s{RO}, s16
        s_and_b32 s{RO+1}, s17, 0xffff
        s_mov_b32 s{RO+2}, 256
        s_mov_b32 s{RO+3}, 0x20000
        s_mov_b64 exec, 1
        v_mov_b32 v8, 0
        v_mov_b32 v9, s94
        buffer_atomic_umax v9, v8, s[{RO}:{RO+3}], 0 offen
        s_not_b32 s98, s90
        v_mov_b32 v10, s98
        buffer_atomic_umax v10, v8, s[{RO}:{RO+3}], 0 offen offset:4
        s_cmp_lg_u32 s{sB}, 0
        s_cbranch_scc1 L_diag_done
        s_sub_u32 s98, s94, s90
        s_sub_u32 s99, s96, s92
        v_mov_b32 v12, s98
        v_mov_b32 v13, s99
        buffer_store_dwordx2 v[12:13], v8, s[{RO}:{RO+3}], 0 offen offset:8
        L_diag_done:
        s_mov_b64 exec, -1
        """)
    a.stamp(12)
    if stamps:
        a("s_branch L_dump")
    else:
        a("s_endpgm")

    a("L_loader:")
    vKO, vVO, vTM = 2, 3, 4
    vFL2, vONE2 = 5, 6
    vU0, vU1, vU2 = 7, 8, 9
    vTRL = 10
    vKG2, vJ2 = 14, 15
    vB = 16
    vAF = 80
    vACC2 = 112
    vPP = 116
    vMM = 148
    vHS = 156
    a(f"""
    v_lshrrev_b32 v{vU0}, 5, v{vL}
    v_and_b32 v{vU1}, 31, v{vL}
    v_xor_b32 v{vU1}, v{vU1}, v{vU0}
    v_lshlrev_b32 v{vU1}, 4, v{vU1}
    v_lshlrev_b32 v{vU0}, 9, v{vU0}
    v_add_u32 v{vKO}, v{vU0}, v{vU1}
    v_lshrrev_b32 v{vU0}, 3, v{vL}
    v_and_b32 v{vU1}, 6, v{vU0}
    v_and_b32 v{vU2}, 7, v{vL}
    v_xor_b32 v{vU1}, v{vU1}, v{vU2}
    v_lshlrev_b32 v{vU1}, 4, v{vU1}
    v_lshlrev_b32 v{vU0}, 9, v{vU0}
    v_add_u32 v{vVO}, v{vU0}, v{vU1}
    v_mov_b32 v{vFL2}, {FL}
    v_mov_b32 v{vONE2}, 1
    """)
    rot(rotk, sROTK)
    a(f"s_and_b32 s{sROTK}, s{sROTK}, 14")
    rot(rotv, sROTV)
    a(f"""
    s_lshl_b32 s{sX0}, s{sG}, 25
    s_add_u32 s{sX0}, s{sX0}, {(65536-4096)*512}
    s_lshl_b32 s{sT0}, s{sC}, 16
    s_add_u32 s{sX0}, s{sX0}, s{sT0}
    s_lshl_b32 s{sT0}, s{sW}, 14
    s_add_u32 s{sT1}, s{sX0}, s{sT0}
    s_lshl_b32 s{sT2}, s{sW}, 7
    s_add_u32 s{sT3}, s{sX0}, s{sT2}
    s_add_u32 s{sX1}, s{sT0}, {KL}
    s_add_u32 s{sX2}, s{sT0}, {VL}
    s_waitcnt lgkmcnt(0)
    s_add_u32 s{RA}, s6, s{sT1}
    s_addc_u32 s{RA+1}, s7, 0
    s_and_b32 s{RA+1}, s{RA+1}, 0xffff
    s_mov_b32 s{RA+2}, 16384
    s_mov_b32 s{RA+3}, 0x20000
    s_add_u32 s{RB}, s8, s{sT3}
    s_addc_u32 s{RB+1}, s9, 0
    s_and_b32 s{RB+1}, s{RB+1}, 0xffff
    s_sub_u32 s{RB+2}, 65536, s{sT2}
    s_mov_b32 s{RB+3}, 0x20000
    """)
    if early_b0:
        a("s_barrier")
        a.stamp(1)
    prev_done = -1
    if depthv is None:
        depthv = depth
    for idx in range(32):
        isK = idx < 16
        i = idx & 15
        d = depth if idx < 16 else min(depthv, depth + (idx - 16) + 1)
        if idx >= d:
            a(f"s_waitcnt vmcnt({d-1})")
            done = idx - d
            for ev in range(prev_done + 1, done + 1):
                if trig and ev == trig - 1:
                    a.signal(vFL2, F_H, vONE2)
                if ev == 15:
                    a("s_mov_b64 exec, 1")
                    a(f"v_mov_b32 v{vU0}, s{sW}")
                    a(f"v_lshlrev_b32 v{vU0}, 2, v{vU0}")
                    a(f"v_add_u32 v{vU0}, v{vFL2}, v{vU0}")
                    a(f"ds_write_b32 v{vU0}, v{vONE2} offset:{F_K}")
                    a.exec_all()
                    a.stamp(2)
            prev_done = max(prev_done, done)
        if isK:
            a(f"s_add_u32 s{sT0}, s{sROTK}, {i}")
            a(f"s_and_b32 s{sT0}, s{sT0}, 15")
            a(f"s_lshl_b32 s{sT0}, s{sT0}, 10")
            a(f"s_add_u32 m0, s{sX1}, {1024*i}")
            x = ((2 * i) & 15) << 4
            if x:
                a(f"v_xor_b32 v{vTM}, {x}, v{vKO}")
                a(f"buffer_load_dwordx4 v{vTM}, s[{RA}:{RA+3}], s{sT0} offen{NT} lds")
            else:
                a("s_nop 0")
                a(f"buffer_load_dwordx4 v{vKO}, s[{RA}:{RA+3}], s{sT0} offen{NT} lds")
        else:
            a(f"s_add_u32 s{sT0}, s{sROTV}, {i}")
            a(f"s_and_b32 s{sT0}, s{sT0}, 15")
            a(f"s_add_u32 m0, s{sX2}, {1024*i}")
            a(f"s_lshl_b32 s{sT0}, s{sT0}, 12")
            a(f"buffer_load_dwordx4 v{vVO}, s[{RB}:{RB+3}], s{sT0} offen{NT} lds")
        if idx == depth - 1:
            if not early_b0:
                a("s_barrier")
                a.stamp(1)
            for r in range(64):
                a(f"v_mov_b32 v{vB+r}, 0")
            a(f"v_lshrrev_b32 v{vKG2}, 4, v{vL}")
            a(f"v_and_b32 v{vJ2}, 15, v{vL}")
            a.tr_addrs(vTRL, f"s{sX2}", vL, vU0, vU1, vU2)
            for r in range(4):
                a(f"v_mov_b32 v{vACC2+r}, 0")
    a.signal(vFL2, F_V, vONE2)
    a.stamp(3)
    if prev_done < 15:
        a("s_waitcnt vmcnt(16)")
        if trig and prev_done < trig - 1:
            a.signal(vFL2, F_H, vONE2)
        a("s_mov_b64 exec, 1")
        a(f"v_mov_b32 v{vU0}, s{sW}")
        a(f"v_lshlrev_b32 v{vU0}, 2, v{vU0}")
        a(f"v_add_u32 v{vU0}, v{vFL2}, v{vU0}")
        a(f"ds_write_b32 v{vU0}, v{vONE2} offset:{F_K}")
        a.exec_all()
        a.stamp(2)
    a.srd(WS, 18, 19, WS_SIZE)
    a(f"""
    v_and_b32 v{vU0}, 1, v{vJ2}
    v_lshlrev_b32 v{vU0}, 4, v{vU0}
    v_bfe_u32 v{vU1}, v{vJ2}, 1, 2
    v_add_u32 v{vU0}, v{vU0}, v{vU1}
    v_lshlrev_b32 v{vU0}, 12, v{vU0}
    v_lshrrev_b32 v{vU1}, 3, v{vJ2}
    v_lshlrev_b32 v{vU1}, 2, v{vU1}
    v_add_u32 v{vU1}, v{vU1}, v{vKG2}
    v_lshlrev_b32 v{vU1}, 4, v{vU1}
    v_add_u32 v{vHS}, v{vU0}, v{vU1}
    s_lshl_b32 s{sX3}, s{sG}, 17
    s_lshl_b32 s{sT0}, s{sW}, 14
    s_add_u32 s{sX3}, s{sX3}, s{sT0}
    s_lshl_b32 s{sT0}, s{sC}, 7
    s_add_u32 s{sX3}, s{sX3}, s{sT0}
    s_add_u32 s{sX3}, s{sX3}, {WS_HA}
    """)
    vPA, vMA = 160, 168
    a(f"""
    v_lshrrev_b32 v{vU0}, 1, v{vKG2}
    v_add_u32 v{vU0}, s{sROTV}, v{vU0}
    v_and_b32 v{vU1}, 1, v{vKG2}
    v_lshlrev_b32 v{vU1}, 4, v{vU1}
    v_and_b32 v{vU2}, 1, v{vJ2}
    v_lshlrev_b32 v{vTM}, 9, v{vU2}
    v_add_u32 v{vU1}, v{vU1}, v{vTM}
    v_add_u32 v{vU1}, {PL}, v{vU1}
    v_lshlrev_b32 v{vU2}, 3, v{vU2}
    v_add_u32 v{vU2}, {SL}, v{vU2}
    """)
    for k in range(8):
        a(f"v_add_u32 v{vTM}, {2*k}, v{vU0}")
        a(f"v_and_b32 v{vTM}, 15, v{vTM}")
        a(f"v_lshlrev_b32 v{vPA+k}, 5, v{vTM}")
        a(f"v_add_u32 v{vPA+k}, v{vPA+k}, v{vU1}")
        a(f"v_lshrrev_b32 v{vTM}, 2, v{vTM}")
        a(f"v_lshlrev_b32 v{vTM}, 4, v{vTM}")
        a(f"v_add_u32 v{vMA+k}, v{vTM}, v{vU2}")
    a.spin_lds(vFL2, F_P, 4, vTM)
    a.stamp(4)
    vM4 = 176
    vMW, vLW = 184, 185
    for w_ in range(4):
        a(f"ds_read_b64 v[{vM4+2*w_}:{vM4+2*w_+1}], v{vU2} offset:{16*w_}")
    for k in range(8):
        a(f"ds_read_b32 v{vMM+k}, v{vMA+k}")
    a("s_waitcnt lgkmcnt(8)")
    a(f"v_max3_f32 v{vMW}, v{vM4}, v{vM4+2}, v{vM4+4}")
    a(f"v_max_f32 v{vMW}, v{vMW}, v{vM4+6}")
    for w_ in range(4):
        a(f"v_sub_f32 v{vM4+2*w_}, v{vM4+2*w_}, v{vMW}")
    for w_ in range(4):
        a(f"v_exp_f32 v{vM4+2*w_}, v{vM4+2*w_}")
    a("s_nop 0")
    a(f"v_mul_f32 v{vLW}, v{vM4}, v{vM4+1}")
    for w_ in range(1, 4):
        a(f"v_fmac_f32 v{vLW}, v{vM4+2*w_}, v{vM4+2*w_+1}")
    a.exec_pat(0xFF00FF00)
    a(f"v_mov_b32 v{vACC2}, v{vMW}")
    a(f"v_mov_b32 v{vACC2+1}, v{vLW}")
    a.exec_all()
    for k in range(8):
        a(f"ds_read_b128 v[{vPP+4*k}:{vPP+4*k+3}], v{vPA+k}")
        if k == 3:
            a("s_waitcnt lgkmcnt(4)")
            for kk in range(8):
                a(f"v_sub_f32 v{vMM+kk}, v{vMM+kk}, v{vMW}")
            for kk in range(8):
                a(f"v_exp_f32 v{vMM+kk}, v{vMM+kk}")
    a("s_waitcnt lgkmcnt(0)")
    for k in range(8):
        for r in range(4):
            a(f"v_mul_f32 v{vPP+4*k+r}, v{vMM+k}, v{vPP+4*k+r}")
    for t in range(4):
        a.exec_pat((3 << (2 * t)) * 0x00010001)
        for J in range(4):
            for e in range(4):
                k = 2 * J + (e >> 1)
                p0 = vPP + 4 * k + 2 * (e & 1)
                a(f"v_cvt_pk_bf16_f32 v{vB+16*t+4*J+e}, v{p0}, v{p0+1}")
    a.exec_all()
    a.stamp(5)
    for J in range(4):
        a(f"s_waitcnt vmcnt({12-4*J})")
        if J == 3:
            a.stamp(6)
        s = vAF + 16 * (J & 1)
        for t in range(4):
            for hf in range(2):
                r = s + 4 * t + 2 * hf
                a(f"ds_read_b64_tr_b16 v[{r}:{r+1}], v{vTRL+t} offset:{1024*(4*J+2*hf)}")
        for t in range(4):
            a(f"s_waitcnt lgkmcnt({6-2*t})")
            a(f"v_mfma_f32_16x16x32_bf16 v[{vACC2}:{vACC2+3}], v[{s+4*t}:{s+4*t+3}], v[{vB+16*t+4*J}:{vB+16*t+4*J+3}], v[{vACC2}:{vACC2+3}]")
    a("s_nop 7")
    a(f"buffer_store_dwordx4 v[{vACC2}:{vACC2+3}], v{vHS}, s[{WS}:{WS+3}], s{sX3} offen sc1")
    a.signal(vFL2, F_D, vONE2)
    a.stamp(7)
    a("s_barrier")
    a("s_barrier")
    if stamps:
        a("L_dump:")
        from stamps import dump
        a("s_waitcnt lgkmcnt(0)")
        a.srd(WS, 18, 19, 0x40000000)
        dump(a, 16, 8, wave_sreg=f"s{sWAVE}", wg_sreg=f"s{sB}", ws_srd=WS, vt=(200,))
    a("L_end:")
    a("s_endpgm")
    return a.text()


if __name__ == "__main__":
    import argparse
    ap = argparse.ArgumentParser()
    ap.add_argument("-o", default="k.s")
    ap.add_argument("--stamps", action="store_true")
    ap.add_argument("--diag", action="store_true")
    ap.add_argument("--depth", type=int, default=8)
    ap.add_argument("--trig", type=int, default=8)
    ap.add_argument("--rotk", default="2*c+4*w")
    ap.add_argument("--rotv", default="c+4*w")
    ap.add_argument("--prio", type=int, default=2)
    ap.add_argument("--pflag", default="sc1")
    ap.add_argument("--nopoison", action="store_true")
    ap.add_argument("--depthv", type=int, default=None)
    ap.add_argument("--late_b0", action="store_true")
    ap.add_argument("--backoff", type=int, default=4)
    args = ap.parse_args()
    body = gen(depth=args.depth, stamps=args.stamps, diag=args.diag, trig=args.trig, rotk=args.rotk, rotv=args.rotv, prio_s=args.prio, backoff=args.backoff, early_b0=not args.late_b0, depthv=args.depthv, pflag=args.pflag, nopoison=args.nopoison)
    open(args.o, "w").write(wrap(body, 256, 512, LDS_BYTES, vgpr=216 if args.stamps else 192, sgpr=102))
```

```python
import sys
from common import *

KL, VL, WL = 0, 65536, 131072
QL = 147456
PL = QL + 1024
SL = PL + 1024
OL = SL + 64
FL = OL + 128
LDS_BYTES = 150528
F_Q, F_P, F_V, F_H, F_D, F_E, F_K = 0, 4, 8, 12, 16, 20, 24
WS_EP, WS_QG, WS_RD, WS_HA, WS_HB, WS_SIZE = 0, 0x1000, 0x22000, 0x40000, 0x140000, 0x160000
SCALE_LOG2E = 0x3DB8AA3B
SPIN_LDS = 1 << 16
SPIN_MEM = 1 << 14

sB, sWAVE = 2, 3
sG, sC, sW, sTAG = 20, 21, 22, 23
sT0, sT1, sT2, sT3 = 24, 25, 26, 27
WS, RA, RB, RC, RO = 28, 32, 36, 40, 44
sCNT, sVAL = 48, 49
sM1, sM2, sM3 = 50, 52, 54
sROTK, sROTV = 56, 57
sX0, sX1, sX2, sX3 = 58, 59, 60, 61
sEX = 62


class G(Asm):
    def __init__(self, stamps=False):
        super().__init__()
        self.n = 0
        self.stamps = stamps

    def lab(self, base):
        self.n += 1
        return f"L_{base}_{self.n}"

    def stamp(self, k):
        if self.stamps:
            self(f"s_memrealtime s[{64+2*k}:{65+2*k}]")

    def srd_ws(self, r, off):
        if off == 0:
            return self.srd(r, 18, 19, WS_SIZE)
        self(f"s_add_u32 s{r}, s18, {off}")
        self(f"s_addc_u32 s{r+1}, s19, 0")
        self(f"s_and_b32 s{r+1}, s{r+1}, 0xffff")
        self(f"s_mov_b32 s{r+2}, {WS_SIZE}")
        self(f"s_mov_b32 s{r+3}, 0x20000")

    def srd(self, r, lo, hi, nrec):
        self(f"s_mov_b32 s{r}, s{lo}")
        self(f"s_and_b32 s{r+1}, s{hi}, 0xffff")
        self(f"s_mov_b32 s{r+2}, {nrec}")
        self(f"s_mov_b32 s{r+3}, 0x20000")

    def exec_all(self):
        self("s_mov_b64 exec, -1")

    def exec_pat(self, lo, hi=None):
        hi = lo if hi is None else hi
        self(f"s_mov_b32 exec_lo, {lo:#x}")
        self(f"s_mov_b32 exec_hi, {hi:#x}")

    def signal(self, vaddr, off, vone):
        self("s_mov_b64 exec, 1")
        self(f"ds_add_u32 v{vaddr}, v{vone} offset:{off}")
        self.exec_all()

    def spin_lds(self, vaddr, off, target, vt):
        L, D = self.lab("spin"), self.lab("spun")
        self(f"s_mov_b32 s{sCNT}, 0")
        self(f"{L}:")
        self(f"ds_read_b32 v{vt}, v{vaddr} offset:{off}")
        self("s_waitcnt lgkmcnt(0)")
        self(f"v_readfirstlane_b32 s{sVAL}, v{vt}")
        self(f"s_cmp_ge_u32 s{sVAL}, {target}")
        self(f"s_cbranch_scc1 {D}")
        self(f"s_add_u32 s{sCNT}, s{sCNT}, 1")
        self(f"s_cmp_lt_u32 s{sCNT}, {SPIN_LDS}")
        self("s_sleep 1")
        self(f"s_cbranch_scc1 {L}")
        self(f"{D}:")

    def tr_addrs(self, dst, base_sexpr, vl, t0, t1, t2):
        self(f"v_lshrrev_b32 v{t0}, 2, v{vl}")
        self(f"v_and_b32 v{t1}, 7, v{t0}")
        self(f"v_lshrrev_b32 v{t0}, 5, v{vl}")
        self(f"v_lshlrev_b32 v{t0}, 10, v{t0}")
        self(f"v_lshlrev_b32 v{t2}, 7, v{t1}")
        self(f"v_add_u32 v{t0}, v{t0}, v{t2}")
        self(f"v_and_b32 v{t2}, 1, v{vl}")
        self(f"v_lshlrev_b32 v{t2}, 3, v{t2}")
        self(f"v_add_u32 v{t0}, v{t0}, v{t2}")
        self(f"v_add_u32 v{t0}, {base_sexpr}, v{t0}")
        self(f"v_and_b32 v{t1}, 6, v{t1}")
        self(f"v_bfe_u32 v{t2}, v{vl}, 1, 1")
        self(f"v_or_b32 v{t1}, v{t1}, v{t2}")
        for t in range(4):
            self(f"v_xor_b32 v{t2}, {2*t}, v{t1}")
            self(f"v_lshlrev_b32 v{t2}, 4, v{t2}")
            self(f"v_add_u32 v{dst+t}, v{t0}, v{t2}")


def gen(depth=8, stamps=False, diag=False, backoff=4, early_b0=True, depthv=None, pflag='sc1', nopoison=False, hst='sc1', hld='sc1', wsoff=0, dbgwg=None, trig=8, rotk="2*c+4*w", rotv="c+4*w", prio_s=2, nt="nt"):
    a = G(stamps)
    NT = (" " + nt) if nt else ""
    vL = 1
    a(f"""
    s_cmp_ge_u32 s{sB}, 256
    s_cbranch_scc1 L_end
    s_load_dwordx16 s[4:19], s[0:1], 0
    """)
    a.stamp(0)
    if diag:
        a("s_memrealtime s[90:91]")
        a("s_memtime s[92:93]")
    if stamps:
        for r in range(66, 96):
            a(f"s_mov_b32 s{r}, 0")
    a(f"""
    v_lshrrev_b32 v2, 6, v0
    v_and_b32 v{vL}, 63, v0
    v_readfirstlane_b32 s{sWAVE}, v2
    s_and_b32 s{sG}, s{sB}, 7
    s_lshr_b32 s{sC}, s{sB}, 3
    s_and_b32 s{sW}, s{sWAVE}, 3
    s_cmp_ge_u32 s{sWAVE}, 4
    s_cbranch_scc1 L_loader
    """)

    def rot(expr, dst):
        terms = expr.split("+")
        first = True
        for t in terms:
            if "*" in t:
                k, v = t.split("*")
            else:
                k, v = "1", t
            src = {"c": sC, "w": sW, "g": sG}[v]
            a(f"s_mul_i32 s{sT0}, s{src}, {k}")
            if first:
                a(f"s_mov_b32 s{dst}, s{sT0}"); first = False
            else:
                a(f"s_add_u32 s{dst}, s{dst}, s{sT0}")
        a(f"s_and_b32 s{dst}, s{dst}, 15")

    if prio_s:
        a(f"s_setprio {prio_s}")
    vKG, vJ, vFL, vONE = 2, 3, 4, 5
    vA0, vT0, vT1, vT2 = 6, 7, 8, 9
    vTR = 10
    vX = 16
    vBF = 32
    vACC = 96
    vPO = 112
    a(f"""
    v_lshrrev_b32 v{vKG}, 4, v{vL}
    v_and_b32 v{vJ}, 15, v{vL}
    v_mov_b32 v{vFL}, {FL}
    v_mov_b32 v{vONE}, 1
    s_cmp_lg_u32 s{sW}, 0
    s_cbranch_scc1 L_s_notq
    """)
    a(f"""
    v_lshrrev_b32 v{vT0}, 3, v{vL}
    v_and_b32 v{vT1}, 6, v{vT0}
    v_and_b32 v{vT2}, 7, v{vL}
    v_xor_b32 v{vT1}, v{vT1}, v{vT2}
    v_lshlrev_b32 v{vT1}, 4, v{vT1}
    v_lshlrev_b32 v{vT0}, 13, v{vT0}
    v_add_u32 v{vA0}, v{vT0}, v{vT1}
    s_lshr_b32 s{sX0}, s{sC}, 3
    s_and_b32 s{sX1}, s{sC}, 7
    s_mul_i32 s{sT0}, s{sX0}, {112*8192}
    s_lshl_b32 s{sT1}, s{sG}, 10
    s_add_u32 s{sT0}, s{sT0}, s{sT1}
    s_lshl_b32 s{sT1}, s{sX1}, 7
    s_add_u32 s{sT0}, s{sT0}, s{sT1}
    s_mul_i32 s{sT2}, s{sX0}, 224
    v_lshlrev_b32 v{vT2}, 3, v{vKG}
    v_add_u32 v{vT2}, s{sT2}, v{vT2}
    s_mov_b32 m0, {WL}
    s_mov_b32 s{sT3}, 0
    s_waitcnt lgkmcnt(0)
    s_add_u32 s{RA}, s10, s{sT0}
    s_addc_u32 s{RA+1}, s11, 0
    s_and_b32 s{RA+1}, s{RA+1}, 0xffff
    s_mov_b32 s{RA+2}, {111*8192+128}
    s_mov_b32 s{RA+3}, 0x20000
    """)
    a.srd(RB, 4, 5, 896)
    for jj in range(7):
        a(f"buffer_load_dwordx2 v[{vX+2*jj}:{vX+2*jj+1}], v{vT2}, s[{RB}:{RB+3}], 0 offen offset:{32*jj}")
    for ii in range(14):
        a(f"buffer_load_dwordx4 v{vA0}, s[{RA}:{RA+3}], s{sT3} offen{NT} lds")
        if ii < 13:
            a(f"s_add_u32 m0, m0, 1024")
            a(f"s_add_u32 s{sT3}, s{sT3}, 65536")
    a.stamp(13)
    a("s_barrier")
    a.stamp(1)
    a(f"s_add_u32 s{sX2}, s18, {wsoff}"); a(f"s_addc_u32 s{sX3}, s19, 0"); a(f"s_load_dword s{sTAG}, s[{sX2}:{sX3}], {WS_EP}")
    a.srd_ws(WS, wsoff)
    a(f"s_mov_b32 s{sT3}, {WL}")
    a.tr_addrs(vTR, f"s{sT3}", vL, vT0, vT1, vT2)
    for r in (vX + 14, vX + 15):
        a(f"v_mov_b32 v{r}, 0")
    for t in range(4):
        a(f"v_mov_b32 v{vBF+16*t+14}, 0")
        a(f"v_mov_b32 v{vBF+16*t+15}, 0")
    a("s_waitcnt vmcnt(0)")
    a.stamp(2)

    def q_reads(t):
        for jj in range(7):
            a(f"ds_read_b64_tr_b16 v[{vBF+16*t+2*jj}:{vBF+16*t+2*jj+1}], v{vTR+t} offset:{2048*jj}")

    def q_mfma(t):
        for J in range(4):
            c = "0" if J == 0 else f"v[{vACC+4*t}:{vACC+4*t+3}]"
            a(f"v_mfma_f32_16x16x32_bf16 v[{vACC+4*t}:{vACC+4*t+3}], v[{vX+4*J}:{vX+4*J+3}], v[{vBF+16*t+4*J}:{vBF+16*t+4*J+3}], {c}")
    q_reads(0); q_reads(1)
    a("s_waitcnt lgkmcnt(7)"); q_mfma(0)
    q_reads(2)
    a("s_waitcnt lgkmcnt(7)"); q_mfma(1)
    q_reads(3)
    a("s_waitcnt lgkmcnt(7)"); q_mfma(2)
    a("s_waitcnt lgkmcnt(0)"); q_mfma(3)
    a(f"""
    s_mov_b32 s{sM1}, 0xffff0000
    s_mov_b32 s{sM1+1}, 0
    s_mov_b32 s{sM2}, 0
    s_mov_b32 s{sM2+1}, 0xffff
    s_mov_b32 s{sM3}, 0
    s_mov_b32 s{sM3+1}, 0xffff0000
    s_mul_i32 s{sTAG}, s{sTAG}, 0x9E3779B1
    s_add_u32 s{sTAG}, s{sTAG}, 0x7F4A7C15
    s_lshl_b32 s{sT0}, s{sG}, 14
    s_lshl_b32 s{sT1}, s{sX0}, 12
    s_add_u32 s{sT0}, s{sT0}, s{sT1}
    s_lshl_b32 s{sT1}, s{sX1}, 9
    s_add_u32 s{sT0}, s{sT0}, s{sT1}
    s_add_u32 s{sT0}, s{sT0}, {WS_QG}
    v_lshlrev_b32 v{vA0}, 3, v{vL}
    s_nop 4
    """)
    a(f"""
    v_cndmask_b32 v8, v{vACC}, v{vACC+4}, s[{sM1}:{sM1+1}]
    v_cndmask_b32 v8, v8, v{vACC+8}, s[{sM2}:{sM2+1}]
    v_cndmask_b32 v8, v8, v{vACC+12}, s[{sM3}:{sM3+1}]
    v_mov_b32 v9, s{sTAG}
    buffer_store_dwordx2 v[8:9], v{vA0}, s[{WS}:{WS+3}], s{sT0} offen {hst}
    """)
    a.stamp(3)
    a("s_branch L_s_common")
    a("L_s_notq:")
    a(f"""
    s_cmp_lg_u32 s{sW}, 1
    s_cbranch_scc1 L_s_noinit
    v_lshlrev_b32 v{vT0}, 2, v{vL}
    v_add_u32 v{vT0}, {FL}, v{vT0}
    v_mov_b32 v{vT1}, 0
    s_mov_b64 exec, 0xffff
    ds_write_b32 v{vT0}, v{vT1}
    s_mov_b64 exec, -1
    L_s_noinit:
    s_waitcnt lgkmcnt(0)
    s_add_u32 s{sX2}, s18, {wsoff}
    s_addc_u32 s{sX3}, s19, 0
    s_load_dword s{sTAG}, s[{sX2}:{sX3}], {WS_EP}
    """)
    a.srd_ws(WS, wsoff)
    a(f"""
    s_cmp_eq_u32 s{sW}, 1
    s_cbranch_scc1 L_s_poison
    s_barrier
    s_waitcnt lgkmcnt(0)
    s_mul_i32 s{sTAG}, s{sTAG}, 0x9E3779B1
    s_add_u32 s{sTAG}, s{sTAG}, 0x7F4A7C15
    s_branch L_s_common
    L_s_poison:
    """)
    for r in range(4):
        a(f"v_mov_b32 v{vPO+r}, -1")
    a(f"""
    v_lshrrev_b32 v{vT0}, 3, v{vL}
    v_and_b32 v{vT1}, 7, v{vL}
    v_lshlrev_b32 v{vT1}, 4, v{vT1}
    v_lshlrev_b32 v{vA0}, 12, v{vT0}
    v_add_u32 v{vA0}, v{vA0}, v{vT1}
    s_lshl_b32 s{sT0}, s{sG}, 17
    s_lshl_b32 s{sT1}, s{sC}, 7
    s_add_u32 s{sT0}, s{sT0}, s{sT1}
    s_add_u32 s{sT0}, s{sT0}, {WS_HA}
    """)
    for i in range(4):
        if not nopoison:
            a(f"buffer_store_dwordx4 v[{vPO}:{vPO+3}], v{vA0}, s[{WS}:{WS+3}], s{sT0} offen {pflag}")
        if i < 3:
            a(f"s_add_u32 s{sT0}, s{sT0}, 32768")
    a(f"""
    v_lshlrev_b32 v{vT0}, 13, v{vT0}
    v_add_u32 v{vT0}, v{vT0}, v{vT1}
    s_and_b32 s{sT2}, s{sC}, 3
    s_lshl_b32 s{sT0}, s{sT2}, 15
    s_lshr_b32 s{sT1}, s{sC}, 2
    s_lshl_b32 s{sT3}, s{sG}, 3
    s_add_u32 s{sT1}, s{sT1}, s{sT3}
    s_lshl_b32 s{sT1}, s{sT1}, 7
    s_add_u32 s{sT0}, s{sT0}, s{sT1}
    s_add_u32 s{sT0}, s{sT0}, {WS_HB}
    s_cmp_eq_u32 s{sT2}, 3
    s_cselect_b32 exec_lo, 0xffff, -1
    s_mov_b32 exec_hi, 0
    {"" if nopoison else f"buffer_store_dwordx4 v[{vPO}:{vPO+3}], v{vT0}, s[{WS}:{WS+3}], s{sT0} offen {pflag}"}
    s_mov_b64 exec, -1
    s_barrier
    s_waitcnt lgkmcnt(0)
    s_mul_i32 s{sTAG}, s{sTAG}, 0x9E3779B1
    s_add_u32 s{sTAG}, s{sTAG}, 0x7F4A7C15
    s_mov_b64 exec, 1
    v_mov_b32 v8, 0
    v_mov_b32 v9, s{sTAG}
    v_mov_b32 v{vA0}, 0
    s_lshl_b32 s{sT0}, s{sG}, 8
    s_lshl_b32 s{sT1}, s{sC}, 3
    s_add_u32 s{sT0}, s{sT0}, s{sT1}
    s_add_u32 s{sT0}, s{sT0}, {WS_RD}
    s_waitcnt vmcnt(0)
    buffer_store_dwordx2 v[8:9], v{vA0}, s[{WS}:{WS+3}], s{sT0} offen {hst}
    s_mov_b64 exec, -1
    """)
    a.stamp(3)
    a("L_s_common:")
    vG = 16
    vEV = 32
    vGA, vEA = 10, 11
    rot(rotk, sROTK)
    a(f"s_and_b32 s{sROTK}, s{sROTK}, 14")
    a(f"""
    v_lshlrev_b32 v{vGA}, 4, v{vL}
    s_lshl_b32 s{sX0}, s{sG}, 14
    s_lshl_b32 s{sT0}, s{sW}, 10
    s_add_u32 s{sX0}, s{sX0}, s{sT0}
    s_add_u32 s{sX0}, s{sX0}, {WS_QG}
    s_add_u32 s{sX1}, s{sX0}, 4096
    s_add_u32 s{sX2}, s{sX0}, 8192
    s_add_u32 s{sX3}, s{sX0}, 12288
    """)
    a(f"""
    s_lshr_b32 s{sT0}, s{sB}, 3
    v_and_b32 v{vT0}, 7, v{vL}
    v_lshlrev_b32 v{vT0}, 2, v{vT0}
    v_add_u32 v{vT0}, s{sT0}, v{vT0}
    v_lshlrev_b32 v{vT0}, 3, v{vT0}
    v_lshrrev_b32 v{vT1}, 3, v{vL}
    v_lshlrev_b32 v{vT1}, 8, v{vT1}
    v_add_u32 v{vT0}, v{vT0}, v{vT1}
    v_and_b32 v{vT1}, 31, v{vL}
    v_lshlrev_b32 v{vT1}, 3, v{vT1}
    s_lshl_b32 s{sT0}, s{sG}, 8
    v_add_u32 v{vT1}, s{sT0}, v{vT1}
    s_cmp_eq_u32 s{sW}, 3
    s_cselect_b64 vcc, -1, 0
    v_cndmask_b32 v{vT0}, v{vT1}, v{vT0}, vcc
    v_add_u32 v{vEA}, {WS_RD}, v{vT0}
    s_cmp_lt_u32 s{sB}, 28
    s_cselect_b32 s{sT0}, 1, 0
    s_cmp_eq_u32 s{sW}, 3
    s_cselect_b32 s63, s{sT0}, 0
    """)
    if trig:
        a.spin_lds(vFL, F_H, 4, vT0)
    a.stamp(4)
    LQ, LQD = a.lab("qg"), a.lab("qgd")
    a(f"s_mov_b32 s{sCNT}, 0")
    a(f"{LQ}:")
    for r in range(4):
        a(f"buffer_load_dwordx4 v[{vG+4*r}:{vG+4*r+3}], v{vGA}, s[{WS}:{WS+3}], s{sX0+r} offen {hld}")
    a(f"""
    s_waitcnt vmcnt(0)
    v_max3_u32 v{vT0}, v{vG+1}, v{vG+3}, v{vG+5}
    v_min3_u32 v{vT1}, v{vG+1}, v{vG+3}, v{vG+5}
    v_max3_u32 v{vT0}, v{vT0}, v{vG+7}, v{vG+9}
    v_min3_u32 v{vT1}, v{vT1}, v{vG+7}, v{vG+9}
    v_max3_u32 v{vT0}, v{vT0}, v{vG+11}, v{vG+13}
    v_min3_u32 v{vT1}, v{vT1}, v{vG+11}, v{vG+13}
    v_max_u32 v{vT0}, v{vT0}, v{vG+15}
    v_min_u32 v{vT1}, v{vT1}, v{vG+15}
    v_xor_b32 v{vT0}, s{sTAG}, v{vT0}
    v_xor_b32 v{vT1}, s{sTAG}, v{vT1}
    v_or_b32 v{vT0}, v{vT0}, v{vT1}
    v_cmp_ne_u32 vcc, 0, v{vT0}
    s_cbranch_vccz {LQD}
    s_add_u32 s{sCNT}, s{sCNT}, 1
    s_cmp_lt_u32 s{sCNT}, {SPIN_MEM}
    s_sleep {backoff}
    s_cbranch_scc1 {LQ}
    {LQD}:
    v_add_f32 v{vG}, v{vG}, v{vG+4}
    v_add_f32 v{vG+2}, v{vG+2}, v{vG+6}
    v_add_f32 v{vG+8}, v{vG+8}, v{vG+12}
    v_add_f32 v{vG+10}, v{vG+10}, v{vG+14}
    v_add_f32 v{vG}, v{vG}, v{vG+8}
    v_add_f32 v{vG+2}, v{vG+2}, v{vG+10}
    v_cvt_pk_bf16_f32 v{vT0}, v{vG}, v{vG+2}
    v_lshlrev_b32 v{vT1}, 2, v{vL}
    s_lshl_b32 s{sT0}, s{sW}, 8
    s_add_u32 s{sT0}, s{sT0}, {QL}
    v_add_u32 v{vT1}, s{sT0}, v{vT1}
    ds_write_b32 v{vT1}, v{vT0}
    """)
    a.signal(vFL, F_Q, vONE)
    vRD = 146
    LNR = a.lab("nord")
    a(f"s_cmp_eq_u32 s{sW}, 2")
    a(f"s_cselect_b32 s{sEX}, 1, s63")
    a(f"s_cmp_eq_u32 s{sEX}, 0")
    a(f"s_cbranch_scc1 {LNR}")
    a(f"buffer_load_dwordx2 v[{vRD}:{vRD+1}], v{vEA}, s[{WS}:{WS+3}], 0 offen {hld}")
    a(f"{LNR}:")
    a(f"v_mov_b32 v148, v{vEA}")
    a.stamp(5)
    vQ = 16
    vK = 48
    vKA = 112
    vD = 120
    vS = 128
    vP = 136
    a(f"""
    v_and_b32 v{vT0}, 1, v{vJ}
    v_lshlrev_b32 v{vT0}, 9, v{vT0}
    v_lshlrev_b32 v{vT1}, 4, v{vKG}
    v_add_u32 v{vT0}, v{vT0}, v{vT1}
    v_add_u32 v{vA0}, {QL}, v{vT0}
    v_xor_b32 v{vT0}, v{vKG}, v{vJ}
    v_lshlrev_b32 v{vT0}, 4, v{vT0}
    v_lshlrev_b32 v{vT1}, 9, v{vJ}
    s_lshl_b32 s{sT0}, s{sW}, 14
    v_add_u32 v{vT1}, s{sT0}, v{vT1}
    """)
    for J in range(8):
        a(f"v_xor_b32 v{vT2}, {J<<6}, v{vT0}")
        a(f"v_add_u32 v{vKA+J}, v{vT1}, v{vT2}")
    a.spin_lds(vFL, F_Q, 4, vT2)
    for J in range(8):
        a(f"ds_read_b128 v[{vQ+4*J}:{vQ+4*J+3}], v{vA0} offset:{64*J}")
    a(f"v_mov_b32 v{vT0}, s{sW}")
    a(f"v_lshlrev_b32 v{vT0}, 2, v{vT0}")
    a(f"v_add_u32 v{vT0}, v{vFL}, v{vT0}")
    a.spin_lds(vT0, F_K, 1, vT2)
    a.stamp(6)
    for tt in range(2):
        for J in range(8):
            a(f"ds_read_b128 v[{vK+32*tt+4*J}:{vK+32*tt+4*J+3}], v{vKA+J} offset:{KL+8192*tt}")
        if tt == 0:
            continue
    a("s_waitcnt lgkmcnt(8)")
    for J in range(8):
        c = "0" if J == 0 else f"v[{vD}:{vD+3}]"
        a(f"v_mfma_f32_16x16x32_bf16 v[{vD}:{vD+3}], v[{vK+4*J}:{vK+4*J+3}], v[{vQ+4*J}:{vQ+4*J+3}], {c}")
    a("s_waitcnt lgkmcnt(0)")
    for J in range(8):
        c = "0" if J == 0 else f"v[{vD+4}:{vD+7}]"
        a(f"v_mfma_f32_16x16x32_bf16 v[{vD+4}:{vD+7}], v[{vK+32+4*J}:{vK+32+4*J+3}], v[{vQ+4*J}:{vQ+4*J+3}], {c}")
    vPA0, vPA1 = 10, 11
    a(f"""
    v_lshlrev_b32 v{vT0}, 1, v{vKG}
    v_add_u32 v{vT0}, s{sROTK}, v{vT0}
    v_add_u32 v{vT1}, 8, v{vT0}
    v_and_b32 v{vT0}, 15, v{vT0}
    v_and_b32 v{vT1}, 15, v{vT1}
    v_lshlrev_b32 v{vT0}, 3, v{vT0}
    v_lshlrev_b32 v{vT1}, 3, v{vT1}
    v_and_b32 v{vT2}, 1, v{vJ}
    v_lshlrev_b32 v{vT2}, 9, v{vT2}
    s_lshl_b32 s{sT0}, s{sW}, 7
    s_add_u32 s{sT0}, s{sT0}, {PL}
    v_add_u32 v{vT2}, s{sT0}, v{vT2}
    v_add_u32 v{vPA0}, v{vT2}, v{vT0}
    v_add_u32 v{vPA1}, v{vT2}, v{vT1}
    s_mov_b32 s{sT1}, 0xffff0000
    s_mov_b32 s{sT2}, {SCALE_LOG2E:#x}
    s_nop 1
    """)
    for e in range(4):
        a(f"v_cvt_pk_bf16_f32 v{vP+e}, v{vD+2*e}, v{vD+2*e+1}")
    for e in range(4):
        a(f"v_lshlrev_b32 v{vS+2*e}, 16, v{vP+e}")
        a(f"v_and_b32 v{vS+2*e+1}, s{sT1}, v{vP+e}")
    vMX, vSUM = 12, 13
    a(f"""
    v_max3_f32 v{vMX}, v{vS}, v{vS+1}, v{vS+2}
    v_max3_f32 v{vMX}, v{vMX}, v{vS+3}, v{vS+4}
    v_max3_f32 v{vMX}, v{vMX}, v{vS+5}, v{vS+6}
    v_max_f32 v{vMX}, v{vMX}, v{vS+7}
    v_mov_b32 v{vT0}, v{vMX}
    s_nop 1
    v_permlane16_swap_b32 v{vMX}, v{vT0}
    v_max_f32 v{vMX}, v{vMX}, v{vT0}
    v_mov_b32 v{vT0}, v{vMX}
    s_nop 1
    v_permlane32_swap_b32 v{vMX}, v{vT0}
    v_max_f32 v{vMX}, v{vMX}, v{vT0}
    v_mul_f32 v{vMX}, s{sT2}, v{vMX}
    """)
    for e in range(8):
        a(f"v_fma_f32 v{vP+e}, v{vS+e}, s{sT2}, -v{vMX}")
    for e in range(8):
        a(f"v_exp_f32 v{vP+e}, v{vP+e}")
    a(f"""
    s_nop 0
    v_add_f32 v{vT0}, v{vP}, v{vP+1}
    v_add_f32 v{vT1}, v{vP+2}, v{vP+3}
    v_add_f32 v{vT2}, v{vP+4}, v{vP+5}
    v_add_f32 v{vSUM}, v{vP+6}, v{vP+7}
    v_add_f32 v{vT0}, v{vT0}, v{vT1}
    v_add_f32 v{vSUM}, v{vSUM}, v{vT2}
    v_add_f32 v{vSUM}, v{vSUM}, v{vT0}
    """)
    a.exec_pat(0x00030003)
    a(f"ds_write_b128 v{vPA0}, v[{vP}:{vP+3}]")
    a(f"ds_write_b128 v{vPA1}, v[{vP+4}:{vP+7}]")
    a.exec_all()
    a(f"""
    v_mov_b32 v{vT0}, v{vSUM}
    s_nop 1
    v_permlane16_swap_b32 v{vSUM}, v{vT0}
    v_add_f32 v{vSUM}, v{vSUM}, v{vT0}
    v_mov_b32 v{vT0}, v{vSUM}
    s_nop 1
    v_permlane32_swap_b32 v{vSUM}, v{vT0}
    v_add_f32 v{vSUM}, v{vSUM}, v{vT0}
    v_lshlrev_b32 v{vT0}, 3, v{vL}
    s_lshl_b32 s{sT0}, s{sW}, 4
    s_add_u32 s{sT0}, s{sT0}, {SL}
    v_add_u32 v{vT0}, s{sT0}, v{vT0}
    s_mov_b64 exec, 3
    ds_write_b64 v{vT0}, v[{vMX}:{vMX+1}]
    s_mov_b64 exec, -1
    """)
    a.signal(vFL, F_P, vONE)
    a.stamp(7)
    LNS, LR, LRD = a.lab("nordc"), a.lab("rd"), a.lab("rdd")
    a(f"s_cmp_eq_u32 s{sEX}, 0")
    a(f"s_cbranch_scc1 {LNS}")
    a(f"s_mov_b32 s{sCNT}, 0")
    a(f"{LR}:")
    a(f"""
    s_waitcnt vmcnt(0)
    v_cmp_ne_u32 vcc, s{sTAG}, v{vRD+1}
    s_cbranch_vccz {LRD}
    s_add_u32 s{sCNT}, s{sCNT}, 1
    s_cmp_lt_u32 s{sCNT}, {SPIN_MEM}
    s_cbranch_scc0 {LRD}
    s_sleep {backoff}
    buffer_load_dwordx2 v[{vRD}:{vRD+1}], v148, s[{WS}:{WS+3}], 0 offen {hld}
    s_branch {LR}
    {LRD}:
    s_cmp_lg_u32 s{sW}, 2
    s_cbranch_scc1 {LNS}
    """)
    a.signal(vFL, F_E, vONE)
    a(f"{LNS}:")
    vSA, vO0, vO1, vWA0, vWA1, vHA, vOS, vOB, vHB = 10, 11, 14, 15, 16, 17, 18, 19, 20
    vST = 22
    vFA, vFB = 26, 27
    a(f"""
    v_lshlrev_b32 v{vT0}, 1, v{vKG}
    v_xor_b32 v{vT0}, v{vT0}, v{vJ}
    v_lshlrev_b32 v{vT0}, 4, v{vT0}
    v_mul_u32_u24 v{vT1}, 896, v{vKG}
    v_add_u32 v{vO0}, v{vT0}, v{vT1}
    v_xor_b32 v{vT0}, 128, v{vT0}
    v_add_u32 v{vO1}, v{vT0}, v{vT1}
    s_lshl_b32 s{sT0}, s{sG}, 9
    s_lshr_b32 s{sT1}, s{sC}, 2
    s_lshl_b32 s{sT1}, s{sT1}, 6
    s_add_u32 s{sT0}, s{sT0}, s{sT1}
    s_mul_i32 s{sT0}, s{sT0}, 896
    s_and_b32 s{sT1}, s{sC}, 3
    s_lshl_b32 s{sT1}, s{sT1}, 8
    s_add_u32 s{sT0}, s{sT0}, s{sT1}
    s_add_u32 s{RC}, s12, s{sT0}
    s_addc_u32 s{RC+1}, s13, 0
    s_and_b32 s{RC+1}, s{RC+1}, 0xffff
    s_sub_u32 s{RC+2}, 3670016, s{sT0}
    s_mov_b32 s{RC+3}, 0x20000
    """)
    a(f"""
    v_lshrrev_b32 v{vT0}, 2, v{vL}
    v_lshlrev_b32 v{vT1}, 8, v{vT0}
    v_and_b32 v{vT0}, 7, v{vT0}
    v_lshlrev_b32 v{vT0}, 1, v{vT0}
    v_bfe_u32 v{vT2}, v{vL}, 1, 1
    v_xor_b32 v{vT0}, v{vT0}, v{vT2}
    v_and_b32 v{vT2}, 1, v{vL}
    v_lshlrev_b32 v{vT2}, 3, v{vT2}
    v_add_u32 v{vT1}, v{vT1}, v{vT2}
    v_add_u32 v{vT1}, {WL}, v{vT1}
    s_lshl_b32 s{sT0}, s{sW}, 2
    v_xor_b32 v{vT2}, s{sT0}, v{vT0}
    v_lshlrev_b32 v{vT2}, 4, v{vT2}
    v_add_u32 v{vWA0}, v{vT1}, v{vT2}
    s_add_u32 s{sT0}, s{sT0}, 2
    v_xor_b32 v{vT2}, s{sT0}, v{vT0}
    v_lshlrev_b32 v{vT2}, 4, v{vT2}
    v_add_u32 v{vWA1}, v{vT1}, v{vT2}
    v_lshrrev_b32 v{vT0}, 2, v{vL}
    v_lshlrev_b32 v{vT0}, 7, v{vT0}
    v_add_u32 v{vSA}, 64, v{vT0}
    v_and_b32 v{vT1}, 3, v{vL}
    v_lshlrev_b32 v{vT1}, 4, v{vT1}
    v_add_u32 v{vHA}, v{vT0}, v{vT1}
    v_and_b32 v{vT0}, 3, v{vL}
    v_lshlrev_b32 v{vT0}, 2, v{vT0}
    v_add_u32 v{vT0}, v{vT0}, v{vKG}
    v_lshlrev_b32 v{vT0}, 1, v{vT0}
    s_lshl_b32 s{sT0}, s{sW}, 5
    s_add_u32 s{sT0}, s{sT0}, {OL}
    v_add_u32 v{vOS}, s{sT0}, v{vT0}
    v_lshlrev_b32 v{vT0}, 3, v{vKG}
    v_add_u32 v{vOB}, {OL}, v{vT0}
    v_and_b32 v{vT0}, 1, v{vJ}
    v_lshlrev_b32 v{vT0}, 6, v{vT0}
    v_lshlrev_b32 v{vT1}, 4, v{vKG}
    v_add_u32 v{vHB}, v{vT0}, v{vT1}
    s_lshl_b32 s{sX1}, s{sG}, 17
    s_lshr_b32 s{sT0}, s{sC}, 2
    s_lshl_b32 s{sT0}, s{sT0}, 2
    s_add_u32 s{sT0}, s{sT0}, s{sW}
    s_lshl_b32 s{sT0}, s{sT0}, 12
    s_add_u32 s{sX1}, s{sX1}, s{sT0}
    s_add_u32 s{sX1}, s{sX1}, {WS_HA}
    s_and_b32 s{sT0}, s{sC}, 3
    s_lshl_b32 s{sT0}, s{sT0}, 2
    s_add_u32 s{sX3}, s{sT0}, s{sW}
    s_lshl_b32 s{sX2}, s{sX3}, 13
    s_lshr_b32 s{sT0}, s{sC}, 2
    s_lshl_b32 s{sT1}, s{sG}, 3
    s_add_u32 s{sT0}, s{sT0}, s{sT1}
    s_lshl_b32 s{sT0}, s{sT0}, 7
    s_add_u32 s{sX2}, s{sX2}, s{sT0}
    s_add_u32 s{sX2}, s{sX2}, {WS_HB}
    """)
    a.spin_lds(vFL, F_V, 4, vT2)
    a.stamp(8)
    a(f"s_lshl_b32 s{sT0}, s{sW}, 12")
    a(f"s_add_u32 s{sT0}, s{sT0}, {WL}")
    a(f"s_mov_b32 m0, s{sT0}")
    a(f"s_mul_i32 s{sT1}, s{sW}, {16*896}")
    for u in range(4):
        a(f"buffer_load_dwordx4 v{vO1 if u & 1 else vO0}, s[{RC}:{RC+3}], s{sT1} offen{NT} lds")
        if u < 3:
            a("s_add_u32 m0, m0, 1024")
            a(f"s_add_u32 s{sT1}, s{sT1}, {4*896}")
    a.spin_lds(vFL, F_E, 1, vT2)
    a.spin_lds(vFL, F_D, 4, vT2)
    a.stamp(9)
    vH = 28
    vWF = 36
    vOF = 52
    vOD = 60

    def ha_loads():
        a(f"buffer_load_dwordx2 v[{vST}:{vST+1}], v{vSA}, s[{WS}:{WS+3}], s{sX1} offen {hld}")
        a(f"buffer_load_dwordx2 v[{vST+2}:{vST+3}], v{vSA}, s[{WS}:{WS+3}], s{sX1} offen offset:2048 {hld}")
        a(f"buffer_load_dwordx4 v[{vH}:{vH+3}], v{vHA}, s[{WS}:{WS+3}], s{sX1} offen {hld}")
        a(f"buffer_load_dwordx4 v[{vH+4}:{vH+7}], v{vHA}, s[{WS}:{WS+3}], s{sX1} offen offset:2048 {hld}")
    ha_loads()
    a("s_waitcnt vmcnt(4)")
    a.stamp(14)
    a("s_barrier")
    a.stamp(15)
    for t, va in ((0, vWA0), (1, vWA1)):
        for J in range(2):
            for hf in range(2):
                r = vWF + 8 * t + 4 * J + 2 * hf
                a(f"ds_read_b64_tr_b16 v[{r}:{r+1}], v{va} offset:{8192*J+4096*hf}")
    LH, LHD = a.lab("ha"), a.lab("had")
    a(f"s_mov_b32 s{sCNT}, 0")
    a(f"{LH}:")
    a(f"""
    s_waitcnt vmcnt(0)
    v_max3_u32 v{vT0}, v{vH}, v{vH+1}, v{vH+2}
    v_max3_u32 v{vT1}, v{vH+3}, v{vH+4}, v{vH+5}
    v_max3_u32 v{vT2}, v{vH+6}, v{vH+7}, v{vST}
    v_max3_u32 v{vT0}, v{vT0}, v{vST+1}, v{vST+2}
    v_max3_u32 v{vT1}, v{vT1}, v{vT2}, v{vST+3}
    v_max_u32 v{vT0}, v{vT0}, v{vT1}
    v_cmp_eq_u32 vcc, -1, v{vT0}
    s_cbranch_vccz {LHD}
    s_add_u32 s{sCNT}, s{sCNT}, 1
    s_cmp_lt_u32 s{sCNT}, {SPIN_MEM}
    s_cbranch_scc0 {LHD}
    """)
    ha_loads()
    a(f"s_branch {LH}")
    a(f"{LHD}:")
    a.stamp(10)
    DPP = "row_mask:0xf bank_mask:0xf"
    a(f"""
    v_max_f32 v{vT0}, v{vST}, v{vST+2}
    s_nop 1
    v_max_f32_dpp v{vT0}, v{vT0}, v{vT0} row_ror:4 {DPP}
    s_nop 1
    v_max_f32_dpp v{vT0}, v{vT0}, v{vT0} row_ror:8 {DPP}
    v_mov_b32 v{vT1}, v{vT0}
    s_nop 1
    v_permlane16_swap_b32 v{vT0}, v{vT1}
    v_max_f32 v{vT0}, v{vT0}, v{vT1}
    v_mov_b32 v{vT1}, v{vT0}
    s_nop 1
    v_permlane32_swap_b32 v{vT0}, v{vT1}
    v_max_f32 v{vT0}, v{vT0}, v{vT1}
    v_sub_f32 v{vFA}, v{vST}, v{vT0}
    v_sub_f32 v{vFB}, v{vST+2}, v{vT0}
    v_exp_f32 v{vFA}, v{vFA}
    v_exp_f32 v{vFB}, v{vFB}
    s_nop 0
    v_mul_f32 v{vT0}, v{vFA}, v{vST+1}
    v_fmac_f32 v{vT0}, v{vFB}, v{vST+3}
    """)
    for r in range(4):
        a(f"v_mul_f32 v{vH+r}, v{vFA}, v{vH+r}")
    a(f"v_add_f32_dpp v{vT0}, v{vT0}, v{vT0} row_ror:4 {DPP}")
    for r in range(4):
        a(f"v_fmac_f32 v{vH+r}, v{vFB}, v{vH+4+r}")
    a(f"""
    v_add_f32_dpp v{vT0}, v{vT0}, v{vT0} row_ror:8 {DPP}
    v_permlane16_swap_b32 v{vH}, v{vH+1}
    v_mov_b32 v{vT1}, v{vT0}
    v_permlane16_swap_b32 v{vH+2}, v{vH+3}
    v_add_f32 v{vH}, v{vH}, v{vH+1}
    v_permlane16_swap_b32 v{vT0}, v{vT1}
    v_add_f32 v{vH+2}, v{vH+2}, v{vH+3}
    v_add_f32 v{vT0}, v{vT0}, v{vT1}
    v_mov_b32 v{vT1}, v{vT0}
    v_permlane32_swap_b32 v{vH}, v{vH+2}
    v_add_f32 v{vH}, v{vH}, v{vH+2}
    v_permlane32_swap_b32 v{vT0}, v{vT1}
    v_add_f32 v{vT0}, v{vT0}, v{vT1}
    v_add_f32_dpp v{vH}, v{vH}, v{vH} row_ror:4 {DPP}
    v_rcp_f32 v{vT0}, v{vT0}
    s_nop 0
    v_add_f32_dpp v{vH}, v{vH}, v{vH} row_ror:8 {DPP}
    s_nop 0
    v_mul_f32 v{vH}, v{vH}, v{vT0}
    v_cvt_pk_bf16_f32 v{vH}, v{vH}, v{vH}
    """)
    a.exec_pat(0x000F000F)
    a(f"ds_write_b16 v{vOS}, v{vH}")
    a.exec_all()
    a(f"""
    s_waitcnt lgkmcnt(0)
    s_barrier
    ds_read2_b64 v[{vOF}:{vOF+3}], v{vOB} offset0:0 offset1:4
    ds_read2_b64 v[{vOF+4}:{vOF+7}], v{vOB} offset0:8 offset1:12
    s_waitcnt lgkmcnt(0)
    """)
    for J in range(2):
        for t in range(2):
            c = "0" if J == 0 else f"v[{vOD+4*t}:{vOD+4*t+3}]"
            a(f"v_mfma_f32_16x16x32_bf16 v[{vOD+4*t}:{vOD+4*t+3}], v[{vWF+8*t+4*J}:{vWF+8*t+4*J+3}], v[{vOF+4*J}:{vOF+4*J+3}], {c}")
    LNB = a.lab("nohb")
    a(f"""
    s_mov_b32 s{sM1}, 0x00020002
    s_mov_b32 s{sM1+1}, 0x00020002
    s_cmp_ge_u32 s{sX3}, 14
    s_cbranch_scc1 {LNB}
    s_nop 4
    """)
    for r in range(4):
        a(f"v_cndmask_b32 v{vOD+r}, v{vOD+r}, v{vOD+4+r}, s[{sM1}:{sM1+1}]")
    a.exec_pat(0x00030003)
    a(f"buffer_store_dwordx4 v[{vOD}:{vOD+3}], v{vHB}, s[{WS}:{WS+3}], s{sX2} offen {hst}")
    a.exec_all()
    a(f"{LNB}:")
    a.stamp(11)
    a("s_cmp_eq_u32 s63, 0")
    a("s_cbranch_scc1 L_fin")
    vF = 28
    a(f"s_lshr_b32 s{sX0}, s{sB}, 1")
    a(f"s_lshl_b32 s{sX0}, s{sX0}, 13")
    a(f"s_and_b32 s{sT0}, s{sB}, 1")
    a(f"s_lshl_b32 s{sT0}, s{sT0}, 6")
    a(f"s_add_u32 s{sX0}, s{sX0}, s{sT0}")
    a(f"s_add_u32 s{sX0}, s{sX0}, {WS_HB}")
    a(f"s_add_u32 s{sX1}, s{sX0}, 4096")
    a.srd(RO, 14, 15, 896)
    LF, LFD = a.lab("fb"), a.lab("fbd")
    a(f"s_mov_b32 s{sCNT}, 0")
    a(f"{LF}:")
    for i in range(4):
        a(f"buffer_load_dwordx4 v[{vF+4*i}:{vF+4*i+3}], v{vHA}, s[{WS}:{WS+3}], s{sX0 + (i >> 1)} offen offset:{2048*(i & 1)} {hld}")
    a("s_waitcnt vmcnt(0)")
    a(f"""
    v_max3_u32 v{vT0}, v{vF}, v{vF+1}, v{vF+2}
    v_max3_u32 v{vT1}, v{vF+3}, v{vF+4}, v{vF+5}
    v_max3_u32 v{vT2}, v{vF+6}, v{vF+7}, v{vF+8}
    v_max3_u32 v{vT0}, v{vT0}, v{vF+9}, v{vF+10}
    v_max3_u32 v{vT1}, v{vT1}, v{vF+11}, v{vF+12}
    v_max3_u32 v{vT2}, v{vT2}, v{vF+13}, v{vF+14}
    v_max3_u32 v{vT0}, v{vT0}, v{vT1}, v{vF+15}
    v_max_u32 v{vT0}, v{vT0}, v{vT2}
    v_cmp_eq_u32 vcc, -1, v{vT0}
    s_cbranch_vccz {LFD}
    s_add_u32 s{sCNT}, s{sCNT}, 1
    s_cmp_lt_u32 s{sCNT}, {SPIN_MEM}
    s_cbranch_scc1 {LF}
    {LFD}:
    """)
    for r in range(4):
        a(f"v_add_f32 v{vF+r}, v{vF+r}, v{vF+4+r}")
        a(f"v_add_f32 v{vF+8+r}, v{vF+8+r}, v{vF+12+r}")
    for r in range(4):
        a(f"v_add_f32 v{vF+r}, v{vF+r}, v{vF+8+r}")
    a(f"""
    s_nop 0
    v_permlane16_swap_b32 v{vF}, v{vF+1}
    v_permlane16_swap_b32 v{vF+2}, v{vF+3}
    v_add_f32 v{vF}, v{vF}, v{vF+1}
    v_add_f32 v{vF+2}, v{vF+2}, v{vF+3}
    s_nop 1
    v_permlane32_swap_b32 v{vF}, v{vF+2}
    v_add_f32 v{vF}, v{vF}, v{vF+2}
    s_nop 1
    v_add_f32_dpp v{vF}, v{vF}, v{vF} row_ror:4 row_mask:0xf bank_mask:0xf
    s_nop 1
    v_add_f32_dpp v{vF}, v{vF}, v{vF} row_ror:8 row_mask:0xf bank_mask:0xf
    v_cvt_pk_bf16_f32 v{vF}, v{vF}, v{vF}
    v_and_b32 v{vT0}, 3, v{vL}
    v_lshlrev_b32 v{vT0}, 2, v{vT0}
    v_add_u32 v{vT0}, v{vT0}, v{vKG}
    v_lshlrev_b32 v{vT0}, 1, v{vT0}
    s_lshl_b32 s{sT0}, s{sB}, 5
    """)
    a.exec_pat(0x000F000F)
    a(f"buffer_store_short v{vF}, v{vT0}, s[{RO}:{RO+3}], s{sT0} offen")
    a(f"""
    s_cmp_lg_u32 s{sB}, 0
    s_cbranch_scc1 L_fin
    s_mov_b64 exec, 1
    v_mov_b32 v{vT1}, s{sTAG}
    v_mov_b32 v{vT2}, 0
    buffer_store_dword v{vT1}, v{vT2}, s[{WS}:{WS+3}], 0 offen {hst}
    """)
    a("L_fin:")
    a.exec_all()
    if diag:
        a(f"""
        s_cmp_lg_u32 s{sW}, 3
        s_cbranch_scc1 L_diag_done
        s_memrealtime s[94:95]
        s_memtime s[96:97]
        s_waitcnt lgkmcnt(0)
        s_mov_b32 s{RO}, s16
        s_and_b32 s{RO+1}, s17, 0xffff
        s_mov_b32 s{RO+2}, 256
        s_mov_b32 s{RO+3}, 0x20000
        s_mov_b64 exec, 1
        v_mov_b32 v8, 0
        v_mov_b32 v9, s94
        buffer_atomic_umax v9, v8, s[{RO}:{RO+3}], 0 offen
        s_not_b32 s98, s90
        v_mov_b32 v10, s98
        buffer_atomic_umax v10, v8, s[{RO}:{RO+3}], 0 offen offset:4
        s_cmp_lg_u32 s{sB}, 0
        s_cbranch_scc1 L_diag_done
        s_sub_u32 s98, s94, s90
        s_sub_u32 s99, s96, s92
        v_mov_b32 v12, s98
        v_mov_b32 v13, s99
        buffer_store_dwordx2 v[12:13], v8, s[{RO}:{RO+3}], 0 offen offset:8
        L_diag_done:
        s_mov_b64 exec, -1
        """)
    a.stamp(12)
    if stamps:
        a("s_branch L_dump")
    else:
        a("s_endpgm")

    a("L_loader:")
    vKO, vVO, vTM = 2, 3, 4
    vFL2, vONE2 = 5, 6
    vU0, vU1, vU2 = 7, 8, 9
    vTRL = 10
    vKG2, vJ2 = 14, 15
    vB = 16
    vAF = 80
    vACC2 = 112
    vPP = 116
    vMM = 148
    vHS = 156
    a(f"""
    v_lshrrev_b32 v{vU0}, 5, v{vL}
    v_and_b32 v{vU1}, 31, v{vL}
    v_xor_b32 v{vU1}, v{vU1}, v{vU0}
    v_lshlrev_b32 v{vU1}, 4, v{vU1}
    v_lshlrev_b32 v{vU0}, 9, v{vU0}
    v_add_u32 v{vKO}, v{vU0}, v{vU1}
    v_lshrrev_b32 v{vU0}, 3, v{vL}
    v_and_b32 v{vU1}, 6, v{vU0}
    v_and_b32 v{vU2}, 7, v{vL}
    v_xor_b32 v{vU1}, v{vU1}, v{vU2}
    v_lshlrev_b32 v{vU1}, 4, v{vU1}
    v_lshlrev_b32 v{vU0}, 9, v{vU0}
    v_add_u32 v{vVO}, v{vU0}, v{vU1}
    v_mov_b32 v{vFL2}, {FL}
    v_mov_b32 v{vONE2}, 1
    """)
    rot(rotk, sROTK)
    a(f"s_and_b32 s{sROTK}, s{sROTK}, 14")
    rot(rotv, sROTV)
    a(f"""
    s_lshl_b32 s{sX0}, s{sG}, 25
    s_add_u32 s{sX0}, s{sX0}, {(65536-4096)*512}
    s_lshl_b32 s{sT0}, s{sC}, 16
    s_add_u32 s{sX0}, s{sX0}, s{sT0}
    s_lshl_b32 s{sT0}, s{sW}, 14
    s_add_u32 s{sT1}, s{sX0}, s{sT0}
    s_lshl_b32 s{sT2}, s{sW}, 7
    s_add_u32 s{sT3}, s{sX0}, s{sT2}
    s_add_u32 s{sX1}, s{sT0}, {KL}
    s_add_u32 s{sX2}, s{sT0}, {VL}
    s_waitcnt lgkmcnt(0)
    s_add_u32 s{RA}, s6, s{sT1}
    s_addc_u32 s{RA+1}, s7, 0
    s_and_b32 s{RA+1}, s{RA+1}, 0xffff
    s_mov_b32 s{RA+2}, 16384
    s_mov_b32 s{RA+3}, 0x20000
    s_add_u32 s{RB}, s8, s{sT3}
    s_addc_u32 s{RB+1}, s9, 0
    s_and_b32 s{RB+1}, s{RB+1}, 0xffff
    s_sub_u32 s{RB+2}, 65536, s{sT2}
    s_mov_b32 s{RB+3}, 0x20000
    """)
    if early_b0:
        a("s_barrier")
        a.stamp(1)
    prev_done = -1
    if depthv is None:
        depthv = depth
    for idx in range(32):
        isK = idx < 16
        i = idx & 15
        d = depth if idx < 16 else min(depthv, depth + (idx - 16) + 1)
        if idx >= d:
            a(f"s_waitcnt vmcnt({d-1})")
            done = idx - d
            for ev in range(prev_done + 1, done + 1):
                if trig and ev == trig - 1:
                    a.signal(vFL2, F_H, vONE2)
                if ev == 15:
                    a("s_mov_b64 exec, 1")
                    a(f"v_mov_b32 v{vU0}, s{sW}")
                    a(f"v_lshlrev_b32 v{vU0}, 2, v{vU0}")
                    a(f"v_add_u32 v{vU0}, v{vFL2}, v{vU0}")
                    a(f"ds_write_b32 v{vU0}, v{vONE2} offset:{F_K}")
                    a.exec_all()
                    a.stamp(2)
            prev_done = max(prev_done, done)
        if isK:
            a(f"s_add_u32 s{sT0}, s{sROTK}, {i}")
            a(f"s_and_b32 s{sT0}, s{sT0}, 15")
            a(f"s_lshl_b32 s{sT0}, s{sT0}, 10")
            a(f"s_add_u32 m0, s{sX1}, {1024*i}")
            x = ((2 * i) & 15) << 4
            if x:
                a(f"v_xor_b32 v{vTM}, {x}, v{vKO}")
                a(f"buffer_load_dwordx4 v{vTM}, s[{RA}:{RA+3}], s{sT0} offen{NT} lds")
            else:
                a("s_nop 0")
                a(f"buffer_load_dwordx4 v{vKO}, s[{RA}:{RA+3}], s{sT0} offen{NT} lds")
        else:
            a(f"s_add_u32 s{sT0}, s{sROTV}, {i}")
            a(f"s_and_b32 s{sT0}, s{sT0}, 15")
            a(f"s_add_u32 m0, s{sX2}, {1024*i}")
            a(f"s_lshl_b32 s{sT0}, s{sT0}, 12")
            a(f"buffer_load_dwordx4 v{vVO}, s[{RB}:{RB+3}], s{sT0} offen{NT} lds")
        if idx == depth - 1:
            if not early_b0:
                a("s_barrier")
                a.stamp(1)
            for r in range(64):
                a(f"v_mov_b32 v{vB+r}, 0")
            a(f"v_lshrrev_b32 v{vKG2}, 4, v{vL}")
            a(f"v_and_b32 v{vJ2}, 15, v{vL}")
            a.tr_addrs(vTRL, f"s{sX2}", vL, vU0, vU1, vU2)
            for r in range(4):
                a(f"v_mov_b32 v{vACC2+r}, 0")
    a.signal(vFL2, F_V, vONE2)
    a.stamp(3)
    if prev_done < 15:
        a("s_waitcnt vmcnt(16)")
        if trig and prev_done < trig - 1:
            a.signal(vFL2, F_H, vONE2)
        a("s_mov_b64 exec, 1")
        a(f"v_mov_b32 v{vU0}, s{sW}")
        a(f"v_lshlrev_b32 v{vU0}, 2, v{vU0}")
        a(f"v_add_u32 v{vU0}, v{vFL2}, v{vU0}")
        a(f"ds_write_b32 v{vU0}, v{vONE2} offset:{F_K}")
        a.exec_all()
        a.stamp(2)
    a.srd_ws(WS, wsoff)
    a(f"""
    v_and_b32 v{vU0}, 1, v{vJ2}
    v_lshlrev_b32 v{vU0}, 4, v{vU0}
    v_bfe_u32 v{vU1}, v{vJ2}, 1, 2
    v_add_u32 v{vU0}, v{vU0}, v{vU1}
    v_lshlrev_b32 v{vU0}, 12, v{vU0}
    v_lshrrev_b32 v{vU1}, 3, v{vJ2}
    v_lshlrev_b32 v{vU1}, 2, v{vU1}
    v_add_u32 v{vU1}, v{vU1}, v{vKG2}
    v_lshlrev_b32 v{vU1}, 4, v{vU1}
    v_add_u32 v{vHS}, v{vU0}, v{vU1}
    s_lshl_b32 s{sX3}, s{sG}, 17
    s_lshl_b32 s{sT0}, s{sW}, 14
    s_add_u32 s{sX3}, s{sX3}, s{sT0}
    s_lshl_b32 s{sT0}, s{sC}, 7
    s_add_u32 s{sX3}, s{sX3}, s{sT0}
    s_add_u32 s{sX3}, s{sX3}, {WS_HA}
    """)
    vPA, vMA = 160, 168
    a(f"""
    v_lshrrev_b32 v{vU0}, 1, v{vKG2}
    v_add_u32 v{vU0}, s{sROTV}, v{vU0}
    v_and_b32 v{vU1}, 1, v{vKG2}
    v_lshlrev_b32 v{vU1}, 4, v{vU1}
    v_and_b32 v{vU2}, 1, v{vJ2}
    v_lshlrev_b32 v{vTM}, 9, v{vU2}
    v_add_u32 v{vU1}, v{vU1}, v{vTM}
    v_add_u32 v{vU1}, {PL}, v{vU1}
    v_lshlrev_b32 v{vU2}, 3, v{vU2}
    v_add_u32 v{vU2}, {SL}, v{vU2}
    """)
    for k in range(8):
        a(f"v_add_u32 v{vTM}, {2*k}, v{vU0}")
        a(f"v_and_b32 v{vTM}, 15, v{vTM}")
        a(f"v_lshlrev_b32 v{vPA+k}, 5, v{vTM}")
        a(f"v_add_u32 v{vPA+k}, v{vPA+k}, v{vU1}")
        a(f"v_lshrrev_b32 v{vTM}, 2, v{vTM}")
        a(f"v_lshlrev_b32 v{vTM}, 4, v{vTM}")
        a(f"v_add_u32 v{vMA+k}, v{vTM}, v{vU2}")
    a.spin_lds(vFL2, F_P, 4, vTM)
    a.stamp(4)
    vM4 = 176
    vMW, vLW = 184, 185
    for w_ in range(4):
        a(f"ds_read_b64 v[{vM4+2*w_}:{vM4+2*w_+1}], v{vU2} offset:{16*w_}")
    for k in range(8):
        a(f"ds_read_b32 v{vMM+k}, v{vMA+k}")
    a("s_waitcnt lgkmcnt(8)")
    a(f"v_max3_f32 v{vMW}, v{vM4}, v{vM4+2}, v{vM4+4}")
    a(f"v_max_f32 v{vMW}, v{vMW}, v{vM4+6}")
    for w_ in range(4):
        a(f"v_sub_f32 v{vM4+2*w_}, v{vM4+2*w_}, v{vMW}")
    for w_ in range(4):
        a(f"v_exp_f32 v{vM4+2*w_}, v{vM4+2*w_}")
    a("s_nop 0")
    a(f"v_mul_f32 v{vLW}, v{vM4}, v{vM4+1}")
    for w_ in range(1, 4):
        a(f"v_fmac_f32 v{vLW}, v{vM4+2*w_}, v{vM4+2*w_+1}")
    a.exec_pat(0xFF00FF00)
    a(f"v_mov_b32 v{vACC2}, v{vMW}")
    a(f"v_mov_b32 v{vACC2+1}, v{vLW}")
    a.exec_all()
    for k in range(8):
        a(f"ds_read_b128 v[{vPP+4*k}:{vPP+4*k+3}], v{vPA+k}")
        if k == 3:
            a("s_waitcnt lgkmcnt(4)")
            for kk in range(8):
                a(f"v_sub_f32 v{vMM+kk}, v{vMM+kk}, v{vMW}")
            for kk in range(8):
                a(f"v_exp_f32 v{vMM+kk}, v{vMM+kk}")
    a("s_waitcnt lgkmcnt(0)")
    for k in range(8):
        for r in range(4):
            a(f"v_mul_f32 v{vPP+4*k+r}, v{vMM+k}, v{vPP+4*k+r}")
    for t in range(4):
        a.exec_pat((3 << (2 * t)) * 0x00010001)
        for J in range(4):
            for e in range(4):
                k = 2 * J + (e >> 1)
                p0 = vPP + 4 * k + 2 * (e & 1)
                a(f"v_cvt_pk_bf16_f32 v{vB+16*t+4*J+e}, v{p0}, v{p0+1}")
    a.exec_all()
    a.stamp(5)
    for J in range(4):
        a(f"s_waitcnt vmcnt({12-4*J})")
        if J == 3:
            a.stamp(6)
        s = vAF + 16 * (J & 1)
        for t in range(4):
            for hf in range(2):
                r = s + 4 * t + 2 * hf
                a(f"ds_read_b64_tr_b16 v[{r}:{r+1}], v{vTRL+t} offset:{1024*(4*J+2*hf)}")
        for t in range(4):
            a(f"s_waitcnt lgkmcnt({6-2*t})")
            a(f"v_mfma_f32_16x16x32_bf16 v[{vACC2}:{vACC2+3}], v[{s+4*t}:{s+4*t+3}], v[{vB+16*t+4*J}:{vB+16*t+4*J+3}], v[{vACC2}:{vACC2+3}]")
    a("s_nop 7")
    a(f"buffer_store_dwordx4 v[{vACC2}:{vACC2+3}], v{vHS}, s[{WS}:{WS+3}], s{sX3} offen {hst}")
    a.signal(vFL2, F_D, vONE2)
    a.stamp(7)
    a("s_barrier")
    a("s_barrier")
    if stamps:
        a("L_dump:")
        from stamps import dump
        a("s_waitcnt lgkmcnt(0)")
        if dbgwg is None:
            a.srd(WS, 18, 19, 0x40000000)
            dump(a, 16, 8, wave_sreg=f"s{sWAVE}", wg_sreg=f"s{sB}", ws_srd=WS, vt=(200,))
        else:
            a(f"s_cmp_lg_u32 s{sB}, {dbgwg}")
            a("s_cbranch_scc1 L_end")
            a.srd(WS, 16, 17, 256)
            a("s_mov_b64 exec, 1")
            a("v_mov_b32 v200, 0")
            a(f"s_cmp_eq_u32 s{sWAVE}, 4")
            a("s_cbranch_scc1 L_dbg_l")
            a(f"s_cmp_lg_u32 s{sWAVE}, 0")
            a("s_cbranch_scc1 L_end")
            for n, k in enumerate((13, 2, 3, 4, 5, 6, 7, 8, 9, 15, 10, 11)):
                a(f"s_sub_u32 s62, s{64+2*k}, s64")
                a("v_mov_b32 v204, s62")
                a(f"buffer_store_dword v204, v200, s[{WS}:{WS+3}], 0 offen offset:{4*n}")
            a("s_branch L_end")
            a("L_dbg_l:")
            for n, k in enumerate((2, 3, 6, 7)):
                a(f"s_sub_u32 s62, s{64+2*k}, s64")
                a("v_mov_b32 v204, s62")
                a(f"buffer_store_dword v204, v200, s[{WS}:{WS+3}], 0 offen offset:{48+4*n}")
    a("L_end:")
    a("s_endpgm")
    return a.text()


if __name__ == "__main__":
    import argparse
    ap = argparse.ArgumentParser()
    ap.add_argument("-o", default="k.s")
    ap.add_argument("--stamps", action="store_true")
    ap.add_argument("--diag", action="store_true")
    ap.add_argument("--depth", type=int, default=8)
    ap.add_argument("--trig", type=int, default=8)
    ap.add_argument("--rotk", default="2*c+4*w")
    ap.add_argument("--rotv", default="c+4*w")
    ap.add_argument("--prio", type=int, default=2)
    ap.add_argument("--dbgwg", type=int, default=None)
    ap.add_argument("--hst", default="sc1")
    ap.add_argument("--hld", default="sc1")
    ap.add_argument("--wsoff", type=lambda x: int(x, 0), default=0)
    ap.add_argument("--pflag", default="sc1")
    ap.add_argument("--nopoison", action="store_true")
    ap.add_argument("--depthv", type=int, default=None)
    ap.add_argument("--late_b0", action="store_true")
    ap.add_argument("--backoff", type=int, default=4)
    args = ap.parse_args()
    body = gen(depth=args.depth, stamps=args.stamps, diag=args.diag, trig=args.trig, rotk=args.rotk, rotv=args.rotv, prio_s=args.prio, backoff=args.backoff, early_b0=not args.late_b0, depthv=args.depthv, pflag=args.pflag, nopoison=args.nopoison, hst=args.hst, hld=args.hld, wsoff=args.wsoff, dbgwg=args.dbgwg)
    open(args.o, "w").write(wrap(body, 256, 512, LDS_BYTES, vgpr=216 if args.stamps else 192, sgpr=102))
```

```python
from common import *

KL, VL, WL = 0, 65536, 131072
QL = 147456
PL = QL + 1024
SM = PL + 512
SS = SM + 32
OL = SS + 32
FL = OL + 128
XL = FL + 128
LDS_BYTES = 149760
F_Q, F_P, F_V, F_H, F_D, F_E, F_K, F_M, F_B, F_PO, F_NB, F_X, F_W, F_QP = 0, 4, 8, 12, 16, 20, 24, 40, 44, 48, 52, 56, 60, 64
WS_EP, WS_QA, WS_RD, WS_R2, WS_HB, WS_QB, WS_HA, WS_HA2, WS_SIZE = (
    0, 0x1000, 0x22000, 0x23000, 0x30000, 0x50000, 0x80000, 0x180000, 0x280000)
SCALE_LOG2E = 0x3DB8AA3B
SPIN_LDS = 1 << 16
SPIN_MEM = 1 << 14
DPP = "row_mask:0xf bank_mask:0xf"

sB, sWAVE = 2, 3
sG, sC, sW, sTAG = 20, 21, 22, 23
sT0, sT1, sT2, sT3 = 24, 25, 26, 27
WS, RA, RB, RC, RO = 28, 32, 36, 40, 44
sCNT, sVAL = 48, 49
sM1, sM2, sM3 = 50, 52, 54
sROTK, sROTV = 56, 57
sX0, sX1, sX2, sX3 = 58, 59, 60, 61
sPUB, sFIN = 62, 63
sXCC, sMODE, sQO, sVAL2 = 96, 97, 98, 99
vL = 1


class G(Asm):
    def __init__(self, stamps):
        super().__init__()
        self.n = 0
        self.stamps = stamps

    def lab(self, base):
        self.n += 1
        return f"L_{base}_{self.n}"

    def stamp(self, k):
        if self.stamps:
            self(f"s_memrealtime s[{64+2*k}:{65+2*k}]")

    def srd(self, r, lo, hi, nrec):
        self(f"s_mov_b32 s{r}, s{lo}")
        self(f"s_and_b32 s{r+1}, s{hi}, 0xffff")
        self(f"s_mov_b32 s{r+2}, {nrec}")
        self(f"s_mov_b32 s{r+3}, 0x20000")

    def srd_off(self, r, lo, hi, soff, nrec):
        self(f"s_add_u32 s{r}, s{lo}, s{soff}")
        self(f"s_addc_u32 s{r+1}, s{hi}, 0")
        self(f"s_and_b32 s{r+1}, s{r+1}, 0xffff")
        self(f"s_mov_b32 s{r+2}, {nrec}")
        self(f"s_mov_b32 s{r+3}, 0x20000")

    def exec_all(self):
        self("s_mov_b64 exec, -1")

    def exec_pat(self, lo, hi=None):
        hi = lo if hi is None else hi
        self(f"s_mov_b32 exec_lo, {lo:#x}")
        self(f"s_mov_b32 exec_hi, {hi:#x}")

    def signal(self, vaddr, off, vone):
        self("s_mov_b64 exec, 1")
        self(f"ds_add_u32 v{vaddr}, v{vone} offset:{off}")
        self.exec_all()

    def setflag(self, vaddr, off, vone):
        self("s_mov_b64 exec, 1")
        self(f"ds_write_b32 v{vaddr}, v{vone} offset:{off}")
        self.exec_all()

    def spin_lds(self, vaddr, off, target, vt, sleep=1, limit=None):
        L, D = self.lab("spin"), self.lab("spun")
        self(f"s_mov_b32 s{sCNT}, 0")
        self(f"{L}:")
        self(f"ds_read_b32 v{vt}, v{vaddr} offset:{off}")
        self("s_waitcnt lgkmcnt(0)")
        self(f"v_readfirstlane_b32 s{sVAL}, v{vt}")
        self(f"s_cmp_ge_u32 s{sVAL}, {target}")
        self(f"s_cbranch_scc1 {D}")
        self(f"s_add_u32 s{sCNT}, s{sCNT}, 1")
        self(f"s_cmp_lt_u32 s{sCNT}, {limit or SPIN_LDS}")
        if sleep:
            self(f"s_sleep {sleep}")
        self(f"s_cbranch_scc1 {L}")
        self(f"{D}:")

    def tr_addrs(self, dst, base, t0, t1, t2):
        self(f"v_lshrrev_b32 v{t0}, 2, v{vL}")
        self(f"v_and_b32 v{t1}, 7, v{t0}")
        self(f"v_lshrrev_b32 v{t0}, 5, v{vL}")
        self(f"v_lshlrev_b32 v{t0}, 10, v{t0}")
        self(f"v_lshlrev_b32 v{t2}, 7, v{t1}")
        self(f"v_add_u32 v{t0}, v{t0}, v{t2}")
        self(f"v_and_b32 v{t2}, 1, v{vL}")
        self(f"v_lshlrev_b32 v{t2}, 3, v{t2}")
        self(f"v_add_u32 v{t0}, v{t0}, v{t2}")
        self(f"v_add_u32 v{t0}, {base}, v{t0}")
        self(f"v_and_b32 v{t1}, 6, v{t1}")
        self(f"v_bfe_u32 v{t2}, v{vL}, 1, 1")
        self(f"v_or_b32 v{t1}, v{t1}, v{t2}")
        for t in range(4):
            self(f"v_xor_b32 v{t2}, {2*t}, v{t1}")
            self(f"v_lshlrev_b32 v{t2}, 4, v{t2}")
            self(f"v_add_u32 v{dst+t}, v{t0}, v{t2}")

    def rot(self, expr, dst):
        first = True
        for t in expr.split("+"):
            k, v = t.split("*") if "*" in t else ("1", t)
            src = {"c": sC, "w": sW, "g": sG}[v]
            if first:
                self(f"s_mul_i32 s{dst}, s{src}, {k}"); first = False
            else:
                self(f"s_mul_i32 s{sT0}, s{src}, {k}")
                self(f"s_add_u32 s{dst}, s{dst}, s{sT0}")
        self(f"s_and_b32 s{dst}, s{dst}, 15")

    def tag_hash(self):
        self(f"s_mul_i32 s{sTAG}, s{sTAG}, 0x9E3779B1")
        self(f"s_add_u32 s{sTAG}, s{sTAG}, 0x7F4A7C15")

    def allreduce_rows(self, v, t, op):
        self(f"v_mov_b32 v{t}, v{v}")
        self("s_nop 1")
        self(f"v_permlane16_swap_b32 v{v}, v{t}")
        self(f"{op} v{v}, v{v}, v{t}")
        self(f"v_mov_b32 v{t}, v{v}")
        self("s_nop 1")
        self(f"v_permlane32_swap_b32 v{v}, v{t}")
        self(f"{op} v{v}, v{v}, v{t}")


class P:
    depth = 8; depthv = None; ramp = None; trig = 9; rotk = "2*c"; rotv = "c"
    prio_s = 2; prio_l = 0; nt = "nt"; backoff = 4; stamps = False; dbgwg = None
    force_slow = False; swapmap = False; qalways_b = False; fin_pipe = True
    trig_to = 0; hold = -1; wo_at = -1; xnt = ''; spoll = 0; spoll_sleep = 2; hbpo_at = 0; exp_stop = 0; exp_q = 4; exp_qf = 'sc1'; qld = 'nt'; hald = 'sc1'; hb_st = 'sc1'; hb_ld = 'sc1'; fin_delay = 0; hb_po = 'sc1'


def s_role(a, p):
    NT = " " + p.nt if p.nt else ""
    vKG, vJ, vFL, vONE = 2, 3, 4, 5
    vA0, vT0, vT1, vT2 = 6, 7, 8, 9
    vQP, vQPA = 150, 152
    if p.prio_s:
        a(f"s_setprio {p.prio_s}")
    a(f"""
    v_lshrrev_b32 v{vKG}, 4, v{vL}
    v_and_b32 v{vJ}, 15, v{vL}
    v_mov_b32 v{vFL}, {FL}
    v_mov_b32 v{vONE}, 1
    s_getreg_b32 s{sXCC}, hwreg(HW_REG_XCC_ID)
    s_and_b32 s{sXCC}, s{sXCC}, 7
    s_mov_b32 s{sPUB}, 0
    s_mov_b32 s{sQO}, {WS_QA}
    v_lshlrev_b32 v{vQPA}, 3, v{vL}
    s_cmp_lg_u32 s{sW}, 0
    s_cbranch_scc1 L_s_notq
    """)
    vTR, vX, vBF, vACC = 10, 16, 32, 96
    a(f"""
    v_lshrrev_b32 v{vT0}, 3, v{vL}
    v_and_b32 v{vT1}, 6, v{vT0}
    v_and_b32 v{vT2}, 7, v{vL}
    v_xor_b32 v{vT1}, v{vT1}, v{vT2}
    v_lshlrev_b32 v{vT1}, 4, v{vT1}
    v_lshlrev_b32 v{vT0}, 13, v{vT0}
    v_add_u32 v{vA0}, v{vT0}, v{vT1}
    s_lshr_b32 s{sX0}, s{sC}, 3
    s_and_b32 s{sX1}, s{sC}, 7
    s_mul_i32 s{sT0}, s{sX0}, {112*8192}
    s_lshl_b32 s{sT1}, s{sG}, 10
    s_add_u32 s{sT0}, s{sT0}, s{sT1}
    s_lshl_b32 s{sT1}, s{sX1}, 7
    s_add_u32 s{sT0}, s{sT0}, s{sT1}
    s_mul_i32 s{sT2}, s{sX0}, 224
    v_lshlrev_b32 v{vT2}, 4, v{vL}
    s_mov_b32 s{sT3}, 0
    s_waitcnt lgkmcnt(0)
    """)
    a.srd_off(RA, 10, 11, sT0, 111 * 8192 + 128)
    a.srd(RB, 4, 5, 896)
    a(f"s_mov_b32 m0, {XL}")
    a("s_mov_b64 exec, 0x3fff")
    a(f"buffer_load_dwordx4 v{vT2}, s[{RB}:{RB+3}], s{sT2} offen {p.xnt} lds")
    a("s_mov_b64 exec, -1")
    a(f"s_mov_b32 m0, {WL}")
    a("s_nop 0")
    for ii in range(14):
        a(f"buffer_load_dwordx4 v{vA0}, s[{RA}:{RA+3}], s{sT3} offen{NT} lds")
        if ii < 13:
            a("s_add_u32 m0, m0, 1024")
            a(f"s_add_u32 s{sT3}, s{sT3}, 65536")
    a.stamp(13)
    a("s_barrier")
    a.stamp(1)
    a(f"s_load_dword s{sTAG}, s[18:19], {WS_EP}")
    a.srd(WS, 18, 19, WS_SIZE)
    a(f"s_mov_b32 s{sT3}, {WL}")
    a.tr_addrs(vTR, f"s{sT3}", vT0, vT1, vT2)
    for r in (vX + 14, vX + 15):
        a(f"v_mov_b32 v{r}, 0")
    for t in range(4):
        a(f"v_mov_b32 v{vBF+16*t+14}, 0")
        a(f"v_mov_b32 v{vBF+16*t+15}, 0")
    a(f"""
    s_mov_b32 s{sM1}, 0xffff0000
    s_mov_b32 s{sM1+1}, 0
    s_mov_b32 s{sM2}, 0
    s_mov_b32 s{sM2+1}, 0xffff
    s_mov_b32 s{sM3}, 0
    s_mov_b32 s{sM3+1}, 0xffff0000
    s_lshl_b32 s{sQO}, s{sG}, 14
    s_lshl_b32 s{sT1}, s{sX0}, 12
    s_add_u32 s{sQO}, s{sQO}, s{sT1}
    s_lshl_b32 s{sT1}, s{sX1}, 9
    s_add_u32 s{sQO}, s{sQO}, s{sT1}
    s_add_u32 s{sQO}, s{sQO}, {WS_QA}
    """)
    vXA = 14
    a(f"v_lshlrev_b32 v{vXA}, 3, v{vKG}")
    a(f"v_add_u32 v{vXA}, {XL}, v{vXA}")
    a.spin_lds(vFL, F_PO, 1, vT0)
    a("s_waitcnt vmcnt(0)")
    if p.hold >= 0:
        a.setflag(vFL, F_W, vONE)
    a.stamp(2)

    def q_reads(t):
        for jj in range(7):
            a(f"ds_read_b64_tr_b16 v[{vBF+16*t+2*jj}:{vBF+16*t+2*jj+1}], v{vTR+t} offset:{2048*jj}")

    def q_mfma(t):
        for J in range(4):
            c = "0" if J == 0 else f"v[{vACC+4*t}:{vACC+4*t+3}]"
            a(f"v_mfma_f32_16x16x32_bf16 v[{vACC+4*t}:{vACC+4*t+3}], v[{vX+4*J}:{vX+4*J+3}], v[{vBF+16*t+4*J}:{vBF+16*t+4*J+3}], {c}")
    for jj in range(7):
        a(f"ds_read_b64 v[{vX+2*jj}:{vX+2*jj+1}], v{vXA} offset:{32*jj}")
    q_reads(0)
    a("s_waitcnt lgkmcnt(7)")
    q_reads(1)
    a("s_waitcnt lgkmcnt(7)"); q_mfma(0)
    q_reads(2)
    a("s_waitcnt lgkmcnt(7)"); q_mfma(1)
    q_reads(3)
    a("s_waitcnt lgkmcnt(7)"); q_mfma(2)
    a("s_waitcnt lgkmcnt(0)"); q_mfma(3)
    a.tag_hash()
    a(f"""
    v_mov_b32 v{vQP+1}, s{sTAG}
    s_mov_b32 s{sPUB}, 1
    v_cndmask_b32 v{vQP}, v{vACC}, v{vACC+4}, s[{sM1}:{sM1+1}]
    v_cndmask_b32 v{vQP}, v{vQP}, v{vACC+8}, s[{sM2}:{sM2+1}]
    s_nop 4
    v_cndmask_b32 v{vQP}, v{vQP}, v{vACC+12}, s[{sM3}:{sM3+1}]
    v_and_b32 v{vQP}, -8, v{vQP}
    v_or_b32 v{vQP}, s{sXCC}, v{vQP}
    buffer_store_dwordx2 v[{vQP}:{vQP+1}], v{vQPA}, s[{WS}:{WS+3}], s{sQO} offen
    """)
    if p.qalways_b:
        a(f"s_add_u32 s{sT0}, s{sQO}, {WS_QB-WS_QA}")
        a(f"buffer_store_dwordx2 v[{vQP}:{vQP+1}], v{vQPA}, s[{WS}:{WS+3}], s{sT0} offen sc1")
        a(f"s_mov_b32 s{sPUB}, 0")
    if p.trig_to:
        a.setflag(vFL, F_QP, vONE)
    a.stamp(3)
    a("s_branch L_s_common")

    vPO = 112
    a("L_s_notq:")
    a(f"""
    s_cmp_lg_u32 s{sW}, 1
    s_cbranch_scc1 L_s_other
    v_lshlrev_b32 v{vT0}, 2, v{vL}
    v_add_u32 v{vT0}, {FL}, v{vT0}
    v_mov_b32 v{vT1}, 0
    s_mov_b32 exec_hi, 0
    ds_write_b32 v{vT0}, v{vT1}
    s_mov_b64 exec, -1
    """)
    for r in range(4):
        a(f"v_mov_b32 v{vPO+r}, -1")
    a(f"""
    v_lshrrev_b32 v{vT0}, 3, v{vL}
    v_and_b32 v{vT1}, 7, v{vL}
    v_lshlrev_b32 v{vT1}, 4, v{vT1}
    v_lshlrev_b32 v{vA0}, 12, v{vT0}
    v_add_u32 v{vA0}, v{vA0}, v{vT1}
    v_lshlrev_b32 v{vT0}, 13, v{vT0}
    v_add_u32 v{vT0}, v{vT0}, v{vT1}
    s_lshl_b32 s{sX0}, s{sG}, 17
    s_lshl_b32 s{sT1}, s{sC}, 7
    s_add_u32 s{sX0}, s{sX0}, s{sT1}
    s_add_u32 s{sX0}, s{sX0}, {WS_HA}
    s_and_b32 s{sT2}, s{sC}, 3
    s_lshl_b32 s{sX1}, s{sT2}, 15
    s_lshr_b32 s{sT1}, s{sC}, 2
    s_lshl_b32 s{sT3}, s{sG}, 3
    s_add_u32 s{sT1}, s{sT1}, s{sT3}
    s_lshl_b32 s{sT1}, s{sT1}, 7
    s_add_u32 s{sX1}, s{sX1}, s{sT1}
    s_add_u32 s{sX1}, s{sX1}, {WS_HB}
    s_waitcnt lgkmcnt(0)
    """)
    a.srd(WS, 18, 19, WS_SIZE)
    a(f"s_load_dword s{sTAG}, s[18:19], {WS_EP}")
    for i in range(4):
        a(f"buffer_store_dwordx4 v[{vPO}:{vPO+3}], v{vA0}, s[{WS}:{WS+3}], s{sX0} offen")
        if i < 3:
            a(f"s_add_u32 s{sX0}, s{sX0}, 32768")
    def hb_poison():
        a(f"""
        s_cmp_eq_u32 s{sT2}, 3
        s_cselect_b32 exec_lo, 0xffff, -1
        s_mov_b32 exec_hi, 0
        buffer_store_dwordx4 v[{vPO}:{vPO+3}], v{vT0}, s[{WS}:{WS+3}], s{sX1} offen {p.hb_po}
        s_mov_b64 exec, -1
        """)
    if p.hbpo_at == 2:
        a(f"s_add_u32 s{sM1}, s18, s{sX1}")
        a(f"s_addc_u32 s{sM1+1}, s19, 0")
        for i in range(4):
            if i >= 2:
                a(f"s_cmp_eq_u32 s{sT2}, 3")
                a(f"s_cselect_b32 s{sVAL}, 0, {8192*i}")
                a(f"s_load_dword s{88+i}, s[{sM1}:{sM1+1}], s{sVAL}")
            else:
                a(f"s_load_dword s{88+i}, s[{sM1}:{sM1+1}], {8192*i}")
    if p.hbpo_at == 0:
        hb_poison()
    a("s_barrier")
    if p.hbpo_at == 0:
        a("s_waitcnt vmcnt(1) lgkmcnt(0)")
        a.signal(vFL, F_PO, vONE)
    else:
        a("s_waitcnt vmcnt(0) lgkmcnt(0)")
        a.signal(vFL, F_PO, vONE)
        hb_poison()
    a.tag_hash()
    a(f"""
    s_mov_b64 exec, 1
    v_mov_b32 v8, 0
    v_mov_b32 v9, s{sTAG}
    v_mov_b32 v{vA0}, 0
    s_lshl_b32 s{sT0}, s{sG}, 8
    s_lshl_b32 s{sT1}, s{sC}, 3
    s_add_u32 s{sT0}, s{sT0}, s{sT1}
    s_add_u32 s{sT0}, s{sT0}, {WS_RD}
    s_waitcnt vmcnt(0)
    buffer_store_dwordx2 v[8:9], v{vA0}, s[{WS}:{WS+3}], s{sT0} offen sc1
    s_mov_b64 exec, -1
    """)
    a.stamp(3)
    a("s_branch L_s_common")
    a("L_s_other:")
    a("s_waitcnt lgkmcnt(0)")
    a(f"s_load_dword s{sTAG}, s[18:19], {WS_EP}")
    a.srd(WS, 18, 19, WS_SIZE)
    a("s_barrier")
    a("s_waitcnt lgkmcnt(0)")
    a.tag_hash()

    a("L_s_common:")
    if p.exp_stop == 1:
        a("s_branch L_exp_exit")
    vG, vGA, vEA = 16, 10, 148
    vRD = 146
    a.rot(p.rotk, sROTK)
    a(f"s_and_b32 s{sROTK}, s{sROTK}, 14")
    a(f"""
    v_lshlrev_b32 v{vGA}, 4, v{vL}
    s_lshl_b32 s{sX0}, s{sG}, 14
    s_lshl_b32 s{sT0}, s{sW}, 10
    s_add_u32 s{sX0}, s{sX0}, s{sT0}
    s_add_u32 s{sX0}, s{sX0}, {WS_QA}
    """)
    a(f"""
    s_lshr_b32 s{sT0}, s{sB}, 3
    v_and_b32 v{vT0}, 7, v{vL}
    v_lshlrev_b32 v{vT0}, 2, v{vT0}
    v_add_u32 v{vT0}, s{sT0}, v{vT0}
    v_lshlrev_b32 v{vT0}, 3, v{vT0}
    v_lshrrev_b32 v{vT1}, 3, v{vL}
    v_lshlrev_b32 v{vT1}, 8, v{vT1}
    v_add_u32 v{vT0}, v{vT0}, v{vT1}
    v_add_u32 v{vEA}, {WS_RD}, v{vT0}
    s_cmp_lt_u32 s{sB}, 28
    s_cselect_b32 s{sT0}, 1, 0
    s_cmp_eq_u32 s{sW}, 3
    s_cselect_b32 s{sFIN}, s{sT0}, 0
    """)
    vQ, vK, vKA, vD, vS, vP, vQF = 16, 48, 112, 120, 128, 136, 144
    a(f"""
    v_and_b32 v{vT0}, 1, v{vJ}
    v_lshlrev_b32 v{vT0}, 9, v{vT0}
    v_lshlrev_b32 v{vT1}, 4, v{vKG}
    v_add_u32 v{vT0}, v{vT0}, v{vT1}
    v_add_u32 v{vQF}, {QL}, v{vT0}
    v_xor_b32 v{vT0}, v{vKG}, v{vJ}
    v_lshlrev_b32 v{vT0}, 4, v{vT0}
    v_lshlrev_b32 v{vT1}, 9, v{vJ}
    s_lshl_b32 s{sT0}, s{sW}, 14
    v_add_u32 v{vT1}, s{sT0}, v{vT1}
    """)
    for J in range(8):
        a(f"v_xor_b32 v{vT2}, {J<<6}, v{vT0}")
        a(f"v_add_u32 v{vKA+J}, v{vT1}, v{vT2}")
    if p.trig_to:
        a.spin_lds(vFL, F_QP, 1, vT0)
    if p.trig:
        a.spin_lds(vFL, F_H, 4, vT0, limit=p.trig_to or None)
    if p.spoll:
        LP, LPD = a.lab("sp"), a.lab("spd")
        a(f"s_add_u32 s{sM2}, s18, s{sX0}")
        a(f"s_addc_u32 s{sM2+1}, s19, 0")
        a(f"s_mov_b32 s{sCNT}, 0")
        a(f"{LP}:")
        for rb in range(4):
            for h in range(2):
                a(f"s_load_dword s{88+2*rb+h}, s[{sM2}:{sM2+1}], {4096*rb+512*h+508} glc")
        a("s_waitcnt lgkmcnt(0)")
        a(f"s_xor_b32 s{sVAL}, s88, s{sTAG}")
        for k in range(1, 8):
            a(f"s_xor_b32 s{88+k}, s{88+k}, s{sTAG}")
            a(f"s_or_b32 s{sVAL}, s{sVAL}, s{88+k}")
        a(f"s_cmp_eq_u32 s{sVAL}, 0")
        a(f"s_cbranch_scc1 {LPD}")
        a(f"s_add_u32 s{sCNT}, s{sCNT}, 1")
        a(f"s_cmp_lt_u32 s{sCNT}, {p.spoll}")
        a(f"s_sleep {p.spoll_sleep}")
        a(f"s_cbranch_scc1 {LP}")
        a(f"{LPD}:")
        if p.stamps:
            for r in range(88, 96):
                a(f"s_mov_b32 s{r}, 0")
    a.stamp(4)
    LQ, LQD, LQU, LQN = a.lab("qg"), a.lab("qgd"), a.lab("qgu"), a.lab("qgn")

    def publish_b():
        lab = a.lab("pub")
        a(f"s_cmp_eq_u32 s{sPUB}, 0")
        a(f"s_cbranch_scc1 {lab}")
        a(f"s_add_u32 s{sT0}, s{sQO}, {WS_QB-WS_QA}")
        a(f"buffer_store_dwordx2 v[{vQP}:{vQP+1}], v{vQPA}, s[{WS}:{WS+3}], s{sT0} offen sc1")
        a(f"s_mov_b32 s{sPUB}, 0")
        a(f"{lab}:")
    a(f"s_mov_b32 s{sCNT}, 0")
    a(f"s_mov_b32 s{sX1}, s{sX0}")
    a(f"{LQ}:")
    a(f"s_add_u32 s{sX2}, s{sX1}, 4096")
    a(f"s_add_u32 s{sX3}, s{sX1}, 8192")
    a(f"s_add_u32 s{sT3}, s{sX1}, 12288")
    for r, sr in enumerate((sX1, sX2, sX3, sT3)[:p.exp_q]):
        a(f"buffer_load_dwordx4 v[{vG+4*r}:{vG+4*r+3}], v{vGA}, s[{WS}:{WS+3}], s{sr} offen {p.qld}")
    if p.exp_q < 4:
        a("s_waitcnt vmcnt(0)")
        a(f"s_branch {LQD}")
    a(f"""
    s_waitcnt vmcnt(0)
    v_max3_u32 v{vT0}, v{vG+1}, v{vG+3}, v{vG+5}
    v_min3_u32 v{vT1}, v{vG+1}, v{vG+3}, v{vG+5}
    v_max3_u32 v{vT0}, v{vT0}, v{vG+7}, v{vG+9}
    v_min3_u32 v{vT1}, v{vT1}, v{vG+7}, v{vG+9}
    v_max3_u32 v{vT0}, v{vT0}, v{vG+11}, v{vG+13}
    v_min3_u32 v{vT1}, v{vT1}, v{vG+11}, v{vG+13}
    v_max_u32 v{vT0}, v{vT0}, v{vG+15}
    v_min_u32 v{vT1}, v{vT1}, v{vG+15}
    v_xor_b32 v{vT0}, s{sTAG}, v{vT0}
    v_xor_b32 v{vT1}, s{sTAG}, v{vT1}
    v_or_b32 v{vT0}, v{vT0}, v{vT1}
    v_cmp_ne_u32 vcc, 0, v{vT0}
    s_cbranch_vccz {LQD}
    s_add_u32 s{sCNT}, s{sCNT}, 1
    s_cmp_lt_u32 s{sCNT}, 3
    s_cbranch_scc1 {LQN}
    """)
    a.setflag(vFL, F_NB, vONE)
    publish_b()
    a(f"""
    s_and_b32 s{sT0}, s{sCNT}, 1
    s_mul_i32 s{sT0}, s{sT0}, {WS_QB-WS_QA}
    s_add_u32 s{sX1}, s{sX0}, s{sT0}
    {LQN}:
    s_cmp_lt_u32 s{sCNT}, {SPIN_MEM}
    s_sleep {p.backoff}
    s_cbranch_scc1 {LQ}
    {LQD}:
    """)
    if p.stamps:
        a("s_waitcnt lgkmcnt(0)")
        a(f"s_mul_i32 s90, s{sCNT}, 100")
        a("s_add_u32 s90, s90, s64")
        a("s_addc_u32 s91, s65, 0")
    a(f"""
    v_or3_b32 v{vT0}, v{vG}, v{vG+2}, v{vG+4}
    v_bitop3_b32 v{vT1}, v{vG}, v{vG+2}, v{vG+4} bitop3:0x80
    v_or3_b32 v{vT0}, v{vT0}, v{vG+6}, v{vG+8}
    v_bitop3_b32 v{vT1}, v{vT1}, v{vG+6}, v{vG+8} bitop3:0x80
    v_or3_b32 v{vT0}, v{vT0}, v{vG+10}, v{vG+12}
    v_bitop3_b32 v{vT1}, v{vT1}, v{vG+10}, v{vG+12} bitop3:0x80
    v_or_b32 v{vT0}, v{vT0}, v{vG+14}
    v_and_b32 v{vT1}, v{vT1}, v{vG+14}
    v_xor_b32 v{vT0}, s{sXCC}, v{vT0}
    v_xor_b32 v{vT1}, s{sXCC}, v{vT1}
    v_or_b32 v{vT0}, v{vT0}, v{vT1}
    v_and_b32 v{vT0}, 7, v{vT0}
    v_cmp_ne_u32 vcc, 0, v{vT0}
    v_add_f32 v{vG}, v{vG}, v{vG+4}
    v_add_f32 v{vG+2}, v{vG+2}, v{vG+6}
    v_add_f32 v{vG+8}, v{vG+8}, v{vG+12}
    v_add_f32 v{vG+10}, v{vG+10}, v{vG+14}
    v_add_f32 v{vG}, v{vG}, v{vG+8}
    v_add_f32 v{vG+2}, v{vG+2}, v{vG+10}
    v_cvt_pk_bf16_f32 v{vT0}, v{vG}, v{vG+2}
    v_lshlrev_b32 v{vT1}, 2, v{vL}
    s_lshl_b32 s{sT0}, s{sW}, 8
    s_add_u32 s{sT0}, s{sT0}, {QL}
    v_add_u32 v{vT1}, s{sT0}, v{vT1}
    ds_write_b32 v{vT1}, v{vT0}
    s_cbranch_vccz {LQU}
    """)
    a.setflag(vFL, F_M, vONE)
    a(f"{LQU}:")
    if p.force_slow:
        a.setflag(vFL, F_M, vONE)
    a.signal(vFL, F_Q, vONE)
    LNR = a.lab("nord")
    a(f"s_cmp_eq_u32 s{sFIN}, 0")
    a(f"s_cbranch_scc1 {LNR}")
    a(f"buffer_load_dwordx2 v[{vRD}:{vRD+1}], v{vEA}, s[{WS}:{WS+3}], 0 offen sc1")
    a(f"{LNR}:")
    a.stamp(5)
    if p.exp_stop == 2:
        a("s_branch L_exp_exit")

    a(f"s_lshl_b32 s{sT0}, s{sW}, 2")
    a(f"v_add_u32 v{vT0}, s{sT0}, v{vFL}")
    a.spin_lds(vT0, F_K, 1, vT2)
    for tt in range(2):
        for J in range(8):
            if tt == 1 and J == 7:
                a("s_waitcnt lgkmcnt(8)")
            a(f"ds_read_b128 v[{vK+32*tt+4*J}:{vK+32*tt+4*J+3}], v{vKA+J} offset:{KL+8192*tt}")
    LW, LWD = a.lab("qw"), a.lab("qwd")
    a(f"s_mov_b32 s{sCNT}, 0")
    a(f"{LW}:")
    a(f"ds_read_b32 v{vT1}, v{vFL} offset:{F_Q}")
    a(f"ds_read_b32 v{vT2}, v{vFL} offset:{F_NB}")
    a("s_waitcnt lgkmcnt(0)")
    a(f"v_readfirstlane_b32 s{sVAL}, v{vT1}")
    a(f"v_readfirstlane_b32 s{sVAL2}, v{vT2}")
    a(f"s_cmp_ge_u32 s{sVAL}, 4")
    a(f"s_cbranch_scc1 {LWD}")
    LW2 = a.lab("qw2")
    a(f"s_cmp_eq_u32 s{sVAL2}, 0")
    a(f"s_cbranch_scc1 {LW2}")
    publish_b()
    a(f"{LW2}:")
    a(f"s_add_u32 s{sCNT}, s{sCNT}, 1")
    a(f"s_cmp_lt_u32 s{sCNT}, {SPIN_LDS}")
    a("s_sleep 1")
    a(f"s_cbranch_scc1 {LW}")
    a(f"{LWD}:")
    a(f"ds_read_b32 v149, v{vFL} offset:{F_M}")
    for J in range(8):
        a(f"ds_read_b128 v[{vQ+4*J}:{vQ+4*J+3}], v{vQF} offset:{64*J}")
    a.stamp(6)
    for J in range(8):
        a(f"s_waitcnt lgkmcnt({7-J})")
        for tt in range(2):
            c = "0" if J == 0 else f"v[{vD+4*tt}:{vD+4*tt+3}]"
            a(f"v_mfma_f32_16x16x32_bf16 v[{vD+4*tt}:{vD+4*tt+3}], v[{vK+32*tt+4*J}:{vK+32*tt+4*J+3}], v[{vQ+4*J}:{vQ+4*J+3}], {c}")
    vPA0, vPA1, vSMA, vSMW = 10, 11, 14, 15
    vMX, vSUM = 12, 13
    a(f"""
    v_readfirstlane_b32 s{sMODE}, v149
    v_lshlrev_b32 v{vT0}, 1, v{vKG}
    v_add_u32 v{vT0}, s{sROTK}, v{vT0}
    v_add_u32 v{vT1}, 8, v{vT0}
    v_and_b32 v{vT0}, 15, v{vT0}
    v_and_b32 v{vT1}, 15, v{vT1}
    v_lshlrev_b32 v{vT0}, 2, v{vT0}
    v_lshlrev_b32 v{vT1}, 2, v{vT1}
    v_and_b32 v{vT2}, 1, v{vJ}
    v_lshlrev_b32 v{vSMA}, 4, v{vT2}
    v_add_u32 v{vSMA}, {SM}, v{vSMA}
    s_lshl_b32 s{sT0}, s{sW}, 2
    v_add_u32 v{vSMW}, s{sT0}, v{vSMA}
    v_lshlrev_b32 v{vT2}, 8, v{vT2}
    s_lshl_b32 s{sT0}, s{sW}, 6
    s_add_u32 s{sT0}, s{sT0}, {PL}
    v_add_u32 v{vT2}, s{sT0}, v{vT2}
    v_add_u32 v{vPA0}, v{vT2}, v{vT0}
    v_add_u32 v{vPA1}, v{vT2}, v{vT1}
    s_mov_b32 s{sT1}, 0xffff0000
    s_mov_b32 s{sT2}, {SCALE_LOG2E:#x}
    """)
    for e in range(4):
        a(f"v_cvt_pk_bf16_f32 v{vP+e}, v{vD+2*e}, v{vD+2*e+1}")
    for e in range(4):
        a(f"v_lshlrev_b32 v{vS+2*e}, 16, v{vP+e}")
        a(f"v_and_b32 v{vS+2*e+1}, s{sT1}, v{vP+e}")
    a(f"""
    v_max3_f32 v{vMX}, v{vS}, v{vS+1}, v{vS+2}
    v_max3_f32 v{vT1}, v{vS+3}, v{vS+4}, v{vS+5}
    v_max3_f32 v{vMX}, v{vMX}, v{vS+6}, v{vS+7}
    v_max_f32 v{vMX}, v{vMX}, v{vT1}
    """)
    a.allreduce_rows(vMX, vT0, "v_max_f32")
    a("s_mov_b64 exec, 3")
    a(f"ds_write_b32 v{vSMW}, v{vMX}")
    a("s_mov_b64 exec, 1")
    a(f"ds_add_u32 v{vFL}, v{vONE} offset:{F_X}")
    a.exec_all()
    a.spin_lds(vFL, F_X, 4, vT0, sleep=0)
    a(f"ds_read_b128 v[16:19], v{vSMA}")
    a("s_waitcnt lgkmcnt(0)")
    a("v_max3_f32 v16, v16, v17, v18")
    a("v_max_f32 v16, v16, v19")
    a(f"v_mul_f32 v{vMX}, s{sT2}, v16")
    for e in range(8):
        a(f"v_fma_f32 v{vP+e}, v{vS+e}, s{sT2}, -v{vMX}")
    for e in range(8):
        a(f"v_exp_f32 v{vP+e}, v{vP+e}")
    a(f"""
    s_nop 0
    v_cvt_pk_bf16_f32 v16, v{vP}, v{vP+1}
    v_cvt_pk_bf16_f32 v17, v{vP+2}, v{vP+3}
    v_cvt_pk_bf16_f32 v18, v{vP+4}, v{vP+5}
    v_cvt_pk_bf16_f32 v19, v{vP+6}, v{vP+7}
    v_add_f32 v{vT0}, v{vP}, v{vP+1}
    v_add_f32 v{vT1}, v{vP+2}, v{vP+3}
    v_add_f32 v{vT2}, v{vP+4}, v{vP+5}
    v_add_f32 v{vSUM}, v{vP+6}, v{vP+7}
    """)
    a.exec_pat(0x00030003)
    a(f"ds_write_b64 v{vPA0}, v[16:17]")
    a(f"ds_write_b64 v{vPA1}, v[18:19]")
    a.exec_all()
    a(f"""
    v_add_f32 v{vT0}, v{vT0}, v{vT1}
    v_add_f32 v{vSUM}, v{vSUM}, v{vT2}
    v_add_f32 v{vSUM}, v{vSUM}, v{vT0}
    """)
    a.allreduce_rows(vSUM, vT0, "v_add_f32")
    a("s_mov_b64 exec, 3")
    a(f"ds_write_b32 v{vSMW}, v{vSUM} offset:{SS-SM}")
    a("s_mov_b64 exec, 1")
    a(f"ds_add_u32 v{vFL}, v{vONE} offset:{F_P}")
    a.exec_all()
    a.stamp(7)
    if p.exp_stop == 3:
        a("s_branch L_exp_exit")

    LNS, LR, LRD = a.lab("nordc"), a.lab("rd"), a.lab("rdd")
    a(f"s_cmp_eq_u32 s{sFIN}, 0")
    a(f"s_cbranch_scc1 {LNS}")
    a(f"s_mov_b32 s{sCNT}, 0")
    a(f"{LR}:")
    a(f"""
    s_waitcnt vmcnt(0)
    v_cmp_ne_u32 vcc, s{sTAG}, v{vRD+1}
    s_cbranch_vccz {LNS}
    s_add_u32 s{sCNT}, s{sCNT}, 1
    s_cmp_lt_u32 s{sCNT}, {SPIN_MEM}
    s_cbranch_scc0 {LNS}
    s_sleep {p.backoff}
    buffer_load_dwordx2 v[{vRD}:{vRD+1}], v{vEA}, s[{WS}:{WS+3}], 0 offen sc1
    s_branch {LR}
    {LNS}:
    """)
    LSL, LS2, LR2, LR2D = a.lab("slowend"), a.lab("slow2"), a.lab("r2"), a.lab("r2d")
    a(f"""
    s_cmp_eq_u32 s{sMODE}, 0
    s_cbranch_scc1 {LSL}
    s_cmp_lg_u32 s{sW}, 1
    s_cbranch_scc1 {LS2}
    v_mov_b32 v16, -1
    v_mov_b32 v17, -1
    v_mov_b32 v18, -1
    v_mov_b32 v19, -1
    v_lshrrev_b32 v{vT0}, 3, v{vL}
    v_and_b32 v{vT1}, 7, v{vL}
    v_lshlrev_b32 v{vT1}, 4, v{vT1}
    v_lshlrev_b32 v{vT0}, 12, v{vT0}
    v_add_u32 v{vT0}, v{vT0}, v{vT1}
    s_lshl_b32 s{sT0}, s{sG}, 17
    s_lshl_b32 s{sT1}, s{sC}, 7
    s_add_u32 s{sT0}, s{sT0}, s{sT1}
    s_add_u32 s{sT0}, s{sT0}, {WS_HA2}
    """)
    for i in range(4):
        a(f"buffer_store_dwordx4 v[16:19], v{vT0}, s[{WS}:{WS+3}], s{sT0} offen sc1")
        if i < 3:
            a(f"s_add_u32 s{sT0}, s{sT0}, 32768")
    a("s_waitcnt vmcnt(0)")
    a.signal(vFL, F_B, vONE)
    a(f"""
    s_mov_b64 exec, 1
    v_mov_b32 v16, 0
    v_mov_b32 v17, s{sTAG}
    v_mov_b32 v{vT0}, 0
    s_lshl_b32 s{sT0}, s{sG}, 8
    s_lshl_b32 s{sT1}, s{sC}, 3
    s_add_u32 s{sT0}, s{sT0}, s{sT1}
    s_add_u32 s{sT0}, s{sT0}, {WS_R2}
    buffer_store_dwordx2 v[16:17], v{vT0}, s[{WS}:{WS+3}], s{sT0} offen sc1
    s_mov_b64 exec, -1
    s_branch {LSL}
    {LS2}:
    s_cmp_lg_u32 s{sW}, 2
    s_cbranch_scc1 {LSL}
    v_and_b32 v{vT0}, 31, v{vL}
    v_lshlrev_b32 v{vT0}, 3, v{vT0}
    s_lshl_b32 s{sT0}, s{sG}, 8
    s_add_u32 s{sT0}, s{sT0}, {WS_R2}
    s_mov_b32 s{sCNT}, 0
    {LR2}:
    buffer_load_dwordx2 v[16:17], v{vT0}, s[{WS}:{WS+3}], s{sT0} offen sc1
    s_waitcnt vmcnt(0)
    v_cmp_ne_u32 vcc, s{sTAG}, v17
    s_cbranch_vccz {LR2D}
    s_add_u32 s{sCNT}, s{sCNT}, 1
    s_cmp_lt_u32 s{sCNT}, {SPIN_MEM}
    s_sleep {p.backoff}
    s_cbranch_scc1 {LR2}
    {LR2D}:
    """)
    a.signal(vFL, F_E, vONE)
    a(f"{LSL}:")

    vSA, vO0, vO1, vWA0, vWA1, vHA, vOS, vOB, vHB = 10, 11, 14, 15, 16, 17, 18, 19, 20
    vST, vFA, vFB = 22, 26, 27
    a(f"""
    v_lshlrev_b32 v{vT0}, 1, v{vKG}
    v_xor_b32 v{vT0}, v{vT0}, v{vJ}
    v_lshlrev_b32 v{vT0}, 4, v{vT0}
    v_mul_u32_u24 v{vT1}, 896, v{vKG}
    v_add_u32 v{vO0}, v{vT0}, v{vT1}
    v_xor_b32 v{vT0}, 128, v{vT0}
    v_add_u32 v{vO1}, v{vT0}, v{vT1}
    s_lshl_b32 s{sT0}, s{sG}, 9
    s_lshr_b32 s{sT1}, s{sC}, 2
    s_lshl_b32 s{sT1}, s{sT1}, 6
    s_add_u32 s{sT0}, s{sT0}, s{sT1}
    s_mul_i32 s{sT0}, s{sT0}, 896
    s_and_b32 s{sT1}, s{sC}, 3
    s_lshl_b32 s{sT1}, s{sT1}, 8
    s_add_u32 s{sT0}, s{sT0}, s{sT1}
    s_add_u32 s{RC}, s12, s{sT0}
    s_addc_u32 s{RC+1}, s13, 0
    s_and_b32 s{RC+1}, s{RC+1}, 0xffff
    s_sub_u32 s{RC+2}, 3670016, s{sT0}
    s_mov_b32 s{RC+3}, 0x20000
    """)
    a.spin_lds(vFL, F_V, 4, vT2)
    a.stamp(8)
    a(f"s_lshl_b32 s{sT0}, s{sW}, 12")
    a(f"s_add_u32 s{sT0}, s{sT0}, {WL}")
    a(f"s_mov_b32 m0, s{sT0}")
    a(f"s_mul_i32 s{sT1}, s{sW}, {16*896}")
    for u in range(4):
        a(f"buffer_load_dwordx4 v{vO1 if u & 1 else vO0}, s[{RC}:{RC+3}], s{sT1} offen{NT} lds")
        if u < 3:
            a("s_add_u32 m0, m0, 1024")
            a(f"s_add_u32 s{sT1}, s{sT1}, {4*896}")
    a(f"""
    v_lshrrev_b32 v{vT0}, 2, v{vL}
    v_lshlrev_b32 v{vT1}, 8, v{vT0}
    v_and_b32 v{vT0}, 7, v{vT0}
    v_lshlrev_b32 v{vT0}, 1, v{vT0}
    v_bfe_u32 v{vT2}, v{vL}, 1, 1
    v_xor_b32 v{vT0}, v{vT0}, v{vT2}
    v_and_b32 v{vT2}, 1, v{vL}
    v_lshlrev_b32 v{vT2}, 3, v{vT2}
    v_add_u32 v{vT1}, v{vT1}, v{vT2}
    v_add_u32 v{vT1}, {WL}, v{vT1}
    s_lshl_b32 s{sT0}, s{sW}, 2
    v_xor_b32 v{vT2}, s{sT0}, v{vT0}
    v_lshlrev_b32 v{vT2}, 4, v{vT2}
    v_add_u32 v{vWA0}, v{vT1}, v{vT2}
    s_add_u32 s{sT0}, s{sT0}, 2
    v_xor_b32 v{vT2}, s{sT0}, v{vT0}
    v_lshlrev_b32 v{vT2}, 4, v{vT2}
    v_add_u32 v{vWA1}, v{vT1}, v{vT2}
    v_lshrrev_b32 v{vT0}, 2, v{vL}
    v_lshlrev_b32 v{vT0}, 7, v{vT0}
    v_add_u32 v{vSA}, 64, v{vT0}
    v_and_b32 v{vT1}, 3, v{vL}
    v_lshlrev_b32 v{vT1}, 4, v{vT1}
    v_add_u32 v{vHA}, v{vT0}, v{vT1}
    v_and_b32 v{vT0}, 3, v{vL}
    v_lshlrev_b32 v{vT0}, 2, v{vT0}
    v_add_u32 v{vT0}, v{vT0}, v{vKG}
    v_lshlrev_b32 v{vT0}, 1, v{vT0}
    v_mov_b32 v21, v{vT0}
    s_lshl_b32 s{sT0}, s{sW}, 5
    s_add_u32 s{sT0}, s{sT0}, {OL}
    v_add_u32 v{vOS}, s{sT0}, v{vT0}
    v_lshlrev_b32 v{vT0}, 3, v{vKG}
    v_add_u32 v{vOB}, {OL}, v{vT0}
    v_and_b32 v{vT0}, 1, v{vJ}
    v_lshlrev_b32 v{vT0}, 6, v{vT0}
    v_lshlrev_b32 v{vT1}, 4, v{vKG}
    v_add_u32 v{vHB}, v{vT0}, v{vT1}
    s_lshl_b32 s{sX1}, s{sG}, 17
    s_lshr_b32 s{sT0}, s{sC}, 2
    s_lshl_b32 s{sT0}, s{sT0}, 2
    s_add_u32 s{sT0}, s{sT0}, s{sW}
    s_lshl_b32 s{sT0}, s{sT0}, 12
    s_add_u32 s{sX1}, s{sX1}, s{sT0}
    s_mul_i32 s{sT0}, s{sMODE}, {WS_HA2-WS_HA}
    s_add_u32 s{sX1}, s{sX1}, s{sT0}
    s_add_u32 s{sX1}, s{sX1}, {WS_HA}
    s_and_b32 s{sT0}, s{sC}, 3
    s_lshl_b32 s{sT0}, s{sT0}, 2
    s_add_u32 s{sX3}, s{sT0}, s{sW}
    s_lshl_b32 s{sX2}, s{sX3}, 13
    s_lshr_b32 s{sT0}, s{sC}, 2
    s_lshl_b32 s{sT1}, s{sG}, 3
    s_add_u32 s{sT0}, s{sT0}, s{sT1}
    s_lshl_b32 s{sT0}, s{sT0}, 7
    s_add_u32 s{sX2}, s{sX2}, s{sT0}
    s_add_u32 s{sX2}, s{sX2}, {WS_HB}
    s_mov_b32 s{sM1}, 0x00020002
    s_mov_b32 s{sM1+1}, 0x00020002
    s_lshr_b32 s{sX0}, s{sB}, 1
    s_lshl_b32 s{sX0}, s{sX0}, 13
    s_and_b32 s{sT0}, s{sB}, 1
    s_lshl_b32 s{sT0}, s{sT0}, 6
    s_add_u32 s{sX0}, s{sX0}, s{sT0}
    s_add_u32 s{sX0}, s{sX0}, {WS_HB}
    s_add_u32 s{sQO}, s{sX0}, 4096
    s_lshl_b32 s{sVAL2}, s{sB}, 5
    """)
    a.srd(RO, 14, 15, 896)
    LFE = a.lab("fe")
    a(f"s_cmp_eq_u32 s{sMODE}, 0")
    a(f"s_cbranch_scc1 {LFE}")
    a.spin_lds(vFL, F_E, 1, vT2)
    a(f"{LFE}:")
    a.spin_lds(vFL, F_D, 4, vT2, sleep=0)
    a.stamp(9)

    vH, vWF, vOF, vOD = 28, 36, 52, 60

    def ha_loads():
        a(f"buffer_load_dwordx2 v[{vST}:{vST+1}], v{vSA}, s[{WS}:{WS+3}], s{sX1} offen {p.hald}")
        a(f"buffer_load_dwordx2 v[{vST+2}:{vST+3}], v{vSA}, s[{WS}:{WS+3}], s{sX1} offen offset:2048 {p.hald}")
        a(f"buffer_load_dwordx4 v[{vH}:{vH+3}], v{vHA}, s[{WS}:{WS+3}], s{sX1} offen {p.hald}")
        a(f"buffer_load_dwordx4 v[{vH+4}:{vH+7}], v{vHA}, s[{WS}:{WS+3}], s{sX1} offen offset:2048 {p.hald}")
    ha_loads()
    a("s_waitcnt vmcnt(4)")
    a.stamp(14)
    a("s_barrier")
    a.stamp(15)
    for t, va in ((0, vWA0), (1, vWA1)):
        for J in range(2):
            for hf in range(2):
                r = vWF + 8 * t + 4 * J + 2 * hf
                a(f"ds_read_b64_tr_b16 v[{r}:{r+1}], v{va} offset:{8192*J+4096*hf}")
    LH, LHD = a.lab("ha"), a.lab("had")
    a(f"s_mov_b32 s{sCNT}, 0")
    a(f"{LH}:")
    a(f"""
    s_waitcnt vmcnt(0)
    v_max3_u32 v{vT0}, v{vH}, v{vH+1}, v{vH+2}
    v_max3_u32 v{vT1}, v{vH+3}, v{vH+4}, v{vH+5}
    v_max3_u32 v{vT2}, v{vH+6}, v{vH+7}, v{vST}
    v_max3_u32 v{vT0}, v{vT0}, v{vST+1}, v{vST+2}
    v_max3_u32 v{vT1}, v{vT1}, v{vT2}, v{vST+3}
    v_max_u32 v{vT0}, v{vT0}, v{vT1}
    v_cmp_eq_u32 vcc, -1, v{vT0}
    v_max_f32 v{vT0}, v{vST}, v{vST+2}
    s_cbranch_vccz {LHD}
    s_add_u32 s{sCNT}, s{sCNT}, 1
    s_cmp_lt_u32 s{sCNT}, {SPIN_MEM}
    s_cbranch_scc0 {LHD}
    """)
    ha_loads()
    a(f"s_branch {LH}")
    a(f"{LHD}:")
    a.stamp(10)
    a(f"""
    s_nop 0
    v_max_f32_dpp v{vT0}, v{vT0}, v{vT0} row_ror:4 {DPP}
    s_nop 1
    v_max_f32_dpp v{vT0}, v{vT0}, v{vT0} row_ror:8 {DPP}
    """)
    a.allreduce_rows(vT0, vT1, "v_max_f32")
    a(f"""
    v_sub_f32 v{vFA}, v{vST}, v{vT0}
    v_sub_f32 v{vFB}, v{vST+2}, v{vT0}
    v_exp_f32 v{vFA}, v{vFA}
    v_exp_f32 v{vFB}, v{vFB}
    s_nop 0
    v_mul_f32 v{vT0}, v{vFA}, v{vST+1}
    v_fmac_f32 v{vT0}, v{vFB}, v{vST+3}
    """)
    for r in range(4):
        a(f"v_mul_f32 v{vH+r}, v{vFA}, v{vH+r}")
    a(f"v_add_f32_dpp v{vT0}, v{vT0}, v{vT0} row_ror:4 {DPP}")
    for r in range(4):
        a(f"v_fmac_f32 v{vH+r}, v{vFB}, v{vH+4+r}")
    a(f"""
    v_add_f32_dpp v{vT0}, v{vT0}, v{vT0} row_ror:8 {DPP}
    v_permlane16_swap_b32 v{vH}, v{vH+1}
    v_mov_b32 v{vT1}, v{vT0}
    v_permlane16_swap_b32 v{vH+2}, v{vH+3}
    v_add_f32 v{vH}, v{vH}, v{vH+1}
    v_permlane16_swap_b32 v{vT0}, v{vT1}
    v_add_f32 v{vH+2}, v{vH+2}, v{vH+3}
    v_add_f32 v{vT0}, v{vT0}, v{vT1}
    v_mov_b32 v{vT1}, v{vT0}
    v_permlane32_swap_b32 v{vH}, v{vH+2}
    v_add_f32 v{vH}, v{vH}, v{vH+2}
    v_permlane32_swap_b32 v{vT0}, v{vT1}
    v_add_f32 v{vT0}, v{vT0}, v{vT1}
    v_add_f32_dpp v{vH}, v{vH}, v{vH} row_ror:4 {DPP}
    v_rcp_f32 v{vT0}, v{vT0}
    s_nop 0
    v_add_f32_dpp v{vH}, v{vH}, v{vH} row_ror:8 {DPP}
    s_nop 0
    v_mul_f32 v{vH}, v{vH}, v{vT0}
    v_cvt_pk_bf16_f32 v{vH}, v{vH}, v{vH}
    """)
    a.exec_pat(0x000F000F)
    a(f"ds_write_b16 v{vOS}, v{vH}")
    a.exec_all()
    a(f"""
    s_waitcnt lgkmcnt(0)
    s_barrier
    ds_read2_b64 v[{vOF}:{vOF+3}], v{vOB} offset0:0 offset1:4
    ds_read2_b64 v[{vOF+4}:{vOF+7}], v{vOB} offset0:8 offset1:12
    """)
    for J in range(2):
        a(f"s_waitcnt lgkmcnt({1-J})")
        for t in range(2):
            c = "0" if J == 0 else f"v[{vOD+4*t}:{vOD+4*t+3}]"
            a(f"v_mfma_f32_16x16x32_bf16 v[{vOD+4*t}:{vOD+4*t+3}], v[{vWF+8*t+4*J}:{vWF+8*t+4*J+3}], v[{vOF+4*J}:{vOF+4*J+3}], {c}")
    LNB = a.lab("nohb")
    a(f"""
    s_cmp_ge_u32 s{sX3}, 14
    s_cbranch_scc1 {LNB}
    s_nop 5
    """)
    for r in range(4):
        a(f"v_cndmask_b32 v{vOD+r}, v{vOD+r}, v{vOD+4+r}, s[{sM1}:{sM1+1}]")
    a.exec_pat(0x00030003)
    a(f"buffer_store_dwordx4 v[{vOD}:{vOD+3}], v{vHB}, s[{WS}:{WS+3}], s{sX2} offen {p.hb_st}")
    a.exec_all()
    a(f"{LNB}:")
    a.stamp(11)

    a(f"s_cmp_eq_u32 s{sFIN}, 0")
    a("s_cbranch_scc1 L_fin")
    if p.fin_delay:
        a(f"s_sleep {p.fin_delay}")
    sets = (28, 68) if p.fin_pipe else (28,)

    def fb_loads(vF):
        for i in range(4):
            so = sX0 if i < 2 else sQO
            a(f"buffer_load_dwordx4 v[{vF+4*i}:{vF+4*i+3}], v{vHA}, s[{WS}:{WS+3}], s{so} offen offset:{2048*(i & 1)} {p.hb_ld}")

    def fb_check(vF, ok):
        a(f"""
        v_max3_u32 v{vT0}, v{vF}, v{vF+1}, v{vF+2}
        v_max3_u32 v{vT1}, v{vF+3}, v{vF+4}, v{vF+5}
        v_max3_u32 v{vT2}, v{vF+6}, v{vF+7}, v{vF+8}
        v_max3_u32 v{vT0}, v{vT0}, v{vF+9}, v{vF+10}
        v_max3_u32 v{vT1}, v{vT1}, v{vF+11}, v{vF+12}
        v_max3_u32 v{vT2}, v{vT2}, v{vF+13}, v{vF+14}
        v_max3_u32 v{vT0}, v{vT0}, v{vT1}, v{vF+15}
        v_max_u32 v{vT0}, v{vT0}, v{vT2}
        v_cmp_eq_u32 vcc, -1, v{vT0}
        s_cbranch_vccz {ok}
        """)

    def fb_finish(vF):
        for r in range(4):
            a(f"v_add_f32 v{vF+r}, v{vF+r}, v{vF+4+r}")
            a(f"v_add_f32 v{vF+8+r}, v{vF+8+r}, v{vF+12+r}")
        for r in range(4):
            a(f"v_add_f32 v{vF+r}, v{vF+r}, v{vF+8+r}")
        a(f"""
        s_nop 0
        v_permlane16_swap_b32 v{vF}, v{vF+1}
        v_permlane16_swap_b32 v{vF+2}, v{vF+3}
        v_add_f32 v{vF}, v{vF}, v{vF+1}
        v_add_f32 v{vF+2}, v{vF+2}, v{vF+3}
        s_nop 1
        v_permlane32_swap_b32 v{vF}, v{vF+2}
        v_add_f32 v{vF}, v{vF}, v{vF+2}
        s_nop 1
        v_add_f32_dpp v{vF}, v{vF}, v{vF} row_ror:4 {DPP}
        s_nop 1
        v_add_f32_dpp v{vF}, v{vF}, v{vF} row_ror:8 {DPP}
        v_cvt_pk_bf16_f32 v{vF}, v{vF}, v{vF}
        """)
        a.exec_pat(0x000F000F)
        a(f"buffer_store_short v{vF}, v21, s[{RO}:{RO+3}], s{sVAL2} offen")
    LF = a.lab("fb")
    oks = [a.lab("fbok") for _ in sets]
    LEP = a.lab("epoch")
    a(f"s_mov_b32 s{sCNT}, 0")
    if p.fin_pipe:
        fb_loads(sets[0])
        a(f"{LF}:")
        fb_loads(sets[1])
        a("s_waitcnt vmcnt(4)")
        fb_check(sets[0], oks[0])
        fb_loads(sets[0])
        a("s_waitcnt vmcnt(4)")
        fb_check(sets[1], oks[1])
        a(f"s_add_u32 s{sCNT}, s{sCNT}, 1")
        a(f"s_cmp_lt_u32 s{sCNT}, {SPIN_MEM}")
        a(f"s_cbranch_scc1 {LF}")
        a("s_waitcnt vmcnt(0)")
        a(f"{oks[0]}:")
        fb_finish(sets[0])
        a(f"s_branch {LEP}")
        a(f"{oks[1]}:")
        fb_finish(sets[1])
    else:
        a(f"{LF}:")
        fb_loads(sets[0])
        a("s_waitcnt vmcnt(0)")
        fb_check(sets[0], oks[0])
        a(f"s_add_u32 s{sCNT}, s{sCNT}, 1")
        a(f"s_cmp_lt_u32 s{sCNT}, {SPIN_MEM}")
        a(f"s_cbranch_scc1 {LF}")
        a(f"{oks[0]}:")
        fb_finish(sets[0])
    a(f"{LEP}:")
    a(f"""
    s_cmp_lg_u32 s{sB}, 0
    s_cbranch_scc1 L_fin
    s_mov_b64 exec, 1
    v_mov_b32 v{vT1}, s{sTAG}
    v_mov_b32 v{vT2}, 0
    buffer_store_dword v{vT1}, v{vT2}, s[{WS}:{WS+3}], 0 offen sc1
    """)
    a("L_fin:")
    if p.exp_stop:
        a("L_exp_exit:")
    a.exec_all()
    a.stamp(12)
    a("s_branch L_dump" if p.stamps else "s_endpgm")


def l_role(a, p):
    NT = " " + p.nt if p.nt else ""
    vKO, vVO, vTM, vFL, vONE = 2, 3, 4, 5, 6
    vU0, vU1, vU2 = 7, 8, 9
    vTR, vKG, vJ = 10, 14, 15
    vB, vAF, vACC = 16, 80, 112
    vPA, vHS, vSMA = 116, 124, 125
    vM4, vL4 = 128, 132
    if p.prio_l:
        a(f"s_setprio {p.prio_l}")
    a(f"""
    v_lshrrev_b32 v{vU0}, 5, v{vL}
    v_and_b32 v{vU1}, 31, v{vL}
    v_xor_b32 v{vU1}, v{vU1}, v{vU0}
    v_lshlrev_b32 v{vU1}, 4, v{vU1}
    v_lshlrev_b32 v{vU0}, 9, v{vU0}
    v_add_u32 v{vKO}, v{vU0}, v{vU1}
    v_lshrrev_b32 v{vU0}, 3, v{vL}
    v_and_b32 v{vU1}, 6, v{vU0}
    v_and_b32 v{vU2}, 7, v{vL}
    v_xor_b32 v{vU1}, v{vU1}, v{vU2}
    v_lshlrev_b32 v{vU1}, 4, v{vU1}
    v_lshlrev_b32 v{vU0}, 9, v{vU0}
    v_add_u32 v{vVO}, v{vU0}, v{vU1}
    v_mov_b32 v{vFL}, {FL}
    v_mov_b32 v{vONE}, 1
    """)
    a.rot(p.rotk, sROTK)
    a(f"s_and_b32 s{sROTK}, s{sROTK}, 14")
    a.rot(p.rotv, sROTV)
    a(f"""
    s_lshl_b32 s{sX0}, s{sG}, 25
    s_add_u32 s{sX0}, s{sX0}, {(65536-4096)*512}
    s_lshl_b32 s{sT0}, s{sC}, 16
    s_add_u32 s{sX0}, s{sX0}, s{sT0}
    s_lshl_b32 s{sT0}, s{sW}, 14
    s_add_u32 s{sT1}, s{sX0}, s{sT0}
    s_lshl_b32 s{sT2}, s{sW}, 7
    s_add_u32 s{sT3}, s{sX0}, s{sT2}
    s_add_u32 s{sX1}, s{sT0}, {KL}
    s_add_u32 s{sX2}, s{sT0}, {VL}
    s_waitcnt lgkmcnt(0)
    """)
    a.srd_off(RA, 6, 7, sT1, 16384)
    a(f"""
    s_add_u32 s{RB}, s8, s{sT3}
    s_addc_u32 s{RB+1}, s9, 0
    s_and_b32 s{RB+1}, s{RB+1}, 0xffff
    s_sub_u32 s{RB+2}, 65536, s{sT2}
    s_mov_b32 s{RB+3}, 0x20000
    s_barrier
    """)
    a.stamp(1)
    depthv = p.depthv or p.depth

    def dep(idx):
        if idx >= 16:
            return min(depthv, p.depth + (idx - 16) + 1)
        if p.ramp:
            return min(p.depth, p.ramp + max(0, idx - p.ramp + 1) // 2)
        return p.depth

    def k_landed():
        a("s_mov_b64 exec, 1")
        a(f"v_mov_b32 v{vU0}, s{sW}")
        a(f"v_lshlrev_b32 v{vU0}, 2, v{vU0}")
        a(f"v_add_u32 v{vU0}, v{vFL}, v{vU0}")
        a(f"ds_write_b32 v{vU0}, v{vONE} offset:{F_K}")
        a.exec_all()
        a.stamp(2)
    prev = -1
    setup_done = False
    for idx in range(32):
        i = idx & 15
        if idx == p.hold:
            l_setup(a, p, vB, vKG, vJ, vTR, vU0, vU1, vU2, vTM, vACC, vPA, vHS, vSMA)
            setup_done = True
            a.spin_lds(vFL, F_W, 1, vTM)
        d = dep(idx)
        if idx >= d:
            if not setup_done:
                l_setup(a, p, vB, vKG, vJ, vTR, vU0, vU1, vU2, vTM, vACC, vPA, vHS, vSMA)
                setup_done = True
            a(f"s_waitcnt vmcnt({d-1})")
            done = idx - d
            for ev in range(prev + 1, done + 1):
                if p.trig and ev == p.trig - 1:
                    a.signal(vFL, F_H, vONE)
                if ev == 15:
                    k_landed()
            prev = max(prev, done)
        if idx < 16:
            a(f"s_add_u32 s{sT0}, s{sROTK}, {i}")
            a(f"s_and_b32 s{sT0}, s{sT0}, 15")
            a(f"s_lshl_b32 s{sT0}, s{sT0}, 10")
            a(f"s_add_u32 m0, s{sX1}, {1024*i}")
            x = ((2 * i) & 15) << 4
            if x:
                a(f"v_xor_b32 v{vTM}, {x}, v{vKO}")
                a(f"buffer_load_dwordx4 v{vTM}, s[{RA}:{RA+3}], s{sT0} offen{NT} lds")
            else:
                a("s_nop 0")
                a(f"buffer_load_dwordx4 v{vKO}, s[{RA}:{RA+3}], s{sT0} offen{NT} lds")
        else:
            a(f"s_add_u32 s{sT0}, s{sROTV}, {i}")
            a(f"s_and_b32 s{sT0}, s{sT0}, 15")
            a(f"s_add_u32 m0, s{sX2}, {1024*i}")
            a(f"s_lshl_b32 s{sT0}, s{sT0}, 12")
            a(f"buffer_load_dwordx4 v{vVO}, s[{RB}:{RB+3}], s{sT0} offen{NT} lds")
    if p.wo_at < 0:
        a.signal(vFL, F_V, vONE)
    a.stamp(3)
    if prev < 15:
        a("s_waitcnt vmcnt(16)")
        if p.trig and prev < p.trig - 1:
            a.signal(vFL, F_H, vONE)
        k_landed()
    if p.exp_stop not in (1, 2):
        a.spin_lds(vFL, F_P, 4, vTM)
    a.stamp(4)
    a(f"ds_read_b32 v136, v{vFL} offset:{F_M}")
    a(f"ds_read_b128 v[{vM4}:{vM4+3}], v{vSMA}")
    a(f"ds_read_b128 v[{vL4}:{vL4+3}], v{vSMA} offset:{SS-SM}")
    for t in range(4):
        a.exec_pat((3 << (2 * t)) * 0x00010001)
        for k in range(8):
            r = vB + 16 * t + 2 * k
            a(f"ds_read_b64 v[{r}:{r+1}], v{vPA+k}")
        if t == 0:
            a.exec_all()
            a("s_waitcnt lgkmcnt(8)")
            a(f"v_readfirstlane_b32 s{sMODE}, v136" if not p.exp_stop else f"s_mov_b32 s{sMODE}, 0")
            a(f"v_max3_f32 v{vM4}, v{vM4}, v{vM4+1}, v{vM4+2}")
            a(f"v_add_f32 v{vL4}, v{vL4}, v{vL4+1}")
            a(f"v_max_f32 v{vM4}, v{vM4}, v{vM4+3}")
            a(f"v_add_f32 v{vL4+2}, v{vL4+2}, v{vL4+3}")
            a(f"s_mov_b32 s{sT2}, {SCALE_LOG2E:#x}")
            a(f"v_mul_f32 v{vM4}, s{sT2}, v{vM4}")
            a(f"v_add_f32 v{vL4}, v{vL4}, v{vL4+2}")
            a.exec_pat(0xFF00FF00)
            a(f"v_mov_b32 v{vACC}, v{vM4}")
            a(f"v_mov_b32 v{vACC+1}, v{vL4}")
    a.exec_all()
    a.stamp(5)
    for J in range(4):
        a(f"s_waitcnt vmcnt({12-4*J})")
        if J == p.wo_at:
            a.signal(vFL, F_V, vONE)
        if J == 3:
            a.stamp(6)
        s = vAF + 16 * (J & 1)
        for t in range(4):
            for hf in range(2):
                r = s + 4 * t + 2 * hf
                a(f"ds_read_b64_tr_b16 v[{r}:{r+1}], v{vTR+t} offset:{1024*(4*J+2*hf)}")
        for t in range(4):
            a(f"s_waitcnt lgkmcnt({6-2*t})")
            a(f"v_mfma_f32_16x16x32_bf16 v[{vACC}:{vACC+3}], v[{s+4*t}:{s+4*t+3}], v[{vB+16*t+4*J}:{vB+16*t+4*J+3}], v[{vACC}:{vACC+3}]")
    LSS, LSD = a.lab("slowst"), a.lab("std")
    a(f"s_cmp_lg_u32 s{sMODE}, 0")
    a(f"s_cbranch_scc1 {LSS}")
    a("s_nop 5")
    a(f"buffer_store_dwordx4 v[{vACC}:{vACC+3}], v{vHS}, s[{WS}:{WS+3}], s{sX3} offen")
    a(f"{LSD}:")
    a.signal(vFL, F_D, vONE)
    a.stamp(7)
    if not p.exp_stop:
        a("s_barrier")
        a("s_barrier")
    a("s_branch L_dump" if p.stamps else "s_endpgm")
    a(f"{LSS}:")
    a.spin_lds(vFL, F_B, 1, vTM)
    a(f"s_add_u32 s{sX3}, s{sX3}, {WS_HA2-WS_HA}")
    a(f"buffer_store_dwordx4 v[{vACC}:{vACC+3}], v{vHS}, s[{WS}:{WS+3}], s{sX3} offen sc1")
    a(f"s_branch {LSD}")


def l_setup(a, p, vB, vKG, vJ, vTR, vU0, vU1, vU2, vTM, vACC, vPA, vHS, vSMA):
    for r in range(64):
        a(f"v_mov_b32 v{vB+r}, 0")
    for r in range(4):
        a(f"v_mov_b32 v{vACC+r}, 0")
    a(f"v_lshrrev_b32 v{vKG}, 4, v{vL}")
    a(f"v_and_b32 v{vJ}, 15, v{vL}")
    a.tr_addrs(vTR, f"s{sX2}", vU0, vU1, vU2)
    a.srd(WS, 18, 19, WS_SIZE)
    a(f"""
    v_and_b32 v{vU0}, 1, v{vJ}
    v_lshlrev_b32 v{vU0}, 4, v{vU0}
    v_bfe_u32 v{vU1}, v{vJ}, 1, 2
    v_add_u32 v{vU0}, v{vU0}, v{vU1}
    v_lshlrev_b32 v{vU0}, 12, v{vU0}
    v_lshrrev_b32 v{vU1}, 3, v{vJ}
    v_lshlrev_b32 v{vU1}, 2, v{vU1}
    v_add_u32 v{vU1}, v{vU1}, v{vKG}
    v_lshlrev_b32 v{vU1}, 4, v{vU1}
    v_add_u32 v{vHS}, v{vU0}, v{vU1}
    s_lshl_b32 s{sX3}, s{sG}, 17
    s_lshl_b32 s{sT0}, s{sW}, 14
    s_add_u32 s{sX3}, s{sX3}, s{sT0}
    s_lshl_b32 s{sT0}, s{sC}, 7
    s_add_u32 s{sX3}, s{sX3}, s{sT0}
    s_add_u32 s{sX3}, s{sX3}, {WS_HA}
    """)
    a(f"""
    v_lshrrev_b32 v{vU0}, 1, v{vKG}
    v_add_u32 v{vU0}, s{sROTV}, v{vU0}
    v_and_b32 v{vU1}, 1, v{vKG}
    v_lshlrev_b32 v{vU1}, 3, v{vU1}
    v_and_b32 v{vU2}, 1, v{vJ}
    v_lshlrev_b32 v{vTM}, 8, v{vU2}
    v_add_u32 v{vU1}, v{vU1}, v{vTM}
    v_add_u32 v{vU1}, {PL}, v{vU1}
    v_lshlrev_b32 v{vU2}, 4, v{vU2}
    v_add_u32 v{vSMA}, {SM}, v{vU2}
    """)
    for k in range(8):
        a(f"v_add_u32 v{vTM}, {2*k}, v{vU0}")
        a(f"v_and_b32 v{vTM}, 15, v{vTM}")
        a(f"v_lshlrev_b32 v{vTM}, 4, v{vTM}")
        a(f"v_add_u32 v{vPA+k}, v{vTM}, v{vU1}")


def gen(p):
    a = G(p.stamps)
    a(f"""
    s_cmp_ge_u32 s{sB}, 256
    s_cbranch_scc1 L_end
    s_load_dwordx16 s[4:19], s[0:1], 0
    """)
    a.stamp(0)
    if p.stamps:
        for r in range(66, 96):
            a(f"s_mov_b32 s{r}, 0")
    a(f"""
    v_lshrrev_b32 v2, 6, v0
    v_and_b32 v{vL}, 63, v0
    v_readfirstlane_b32 s{sWAVE}, v2
    {"s_lshr_b32 s%d, s%d, 5" % (sG, sB) if p.swapmap else "s_and_b32 s%d, s%d, 7" % (sG, sB)}
    {"s_and_b32 s%d, s%d, 31" % (sC, sB) if p.swapmap else "s_lshr_b32 s%d, s%d, 3" % (sC, sB)}
    s_and_b32 s{sW}, s{sWAVE}, 3
    s_cmp_ge_u32 s{sWAVE}, 4
    s_cbranch_scc1 L_loader
    """)
    s_role(a, p)
    a("L_loader:")
    l_role(a, p)
    if p.stamps:
        a("L_dump:")
        from stamps import dump
        a("s_waitcnt lgkmcnt(0)")
        if p.dbgwg is None:
            a.srd(WS, 18, 19, 0x40000000)
            dump(a, 16, 8, wave_sreg=f"s{sWAVE}", wg_sreg=f"s{sB}", ws_srd=WS, vt=(200,))
        else:
            a(f"s_cmp_lg_u32 s{sB}, {p.dbgwg}")
            a("s_cbranch_scc1 L_end")
            a.srd(WS, 16, 17, 256)
            a("s_mov_b64 exec, 1")
            a("v_mov_b32 v200, 0")
            a(f"s_cmp_eq_u32 s{sWAVE}, 4")
            a("s_cbranch_scc1 L_dbg_l")
            a(f"s_cmp_lg_u32 s{sWAVE}, 0")
            a("s_cbranch_scc1 L_end")
            for n, k in enumerate((13, 2, 3, 4, 5, 6, 7, 8, 9, 15, 10, 11)):
                a(f"s_sub_u32 s62, s{64+2*k}, s64")
                a("v_mov_b32 v204, s62")
                a(f"buffer_store_dword v204, v200, s[{WS}:{WS+3}], 0 offen offset:{4*n}")
            a("s_branch L_end")
            a("L_dbg_l:")
            for n, k in enumerate((2, 3, 6, 7)):
                a(f"s_sub_u32 s62, s{64+2*k}, s64")
                a("v_mov_b32 v204, s62")
                a(f"buffer_store_dword v204, v200, s[{WS}:{WS+3}], 0 offen offset:{48+4*n}")
    a("L_end:")
    a("s_endpgm")
    return wrap(a.text(), 256, 512, LDS_BYTES, vgpr=216 if p.stamps else 160, sgpr=102)


if __name__ == "__main__":
    import argparse
    ap = argparse.ArgumentParser()
    ap.add_argument("-o", default="k.s")
    for k in [k for k in dir(P) if not k.startswith("_")]:
        v = getattr(P, k)
        if isinstance(v, bool):
            ap.add_argument("--" + k, type=lambda x: x not in ("0", "False"), default=v, nargs="?", const=True)
        elif isinstance(v, int) or v is None:
            ap.add_argument("--" + k, type=int, default=v)
        else:
            ap.add_argument("--" + k, default=v)
    args = ap.parse_args()
    p = P()
    for k in vars(args):
        setattr(p, k, getattr(args, k))
    open(args.o, "w").write(gen(p))
```

```python
from common import *

KL, VL, WL = 0, 65536, 131072
QL = 147456
PL = QL + 1024
SM = PL + 512
SS = SM + 32
OL = SS + 32
FL = OL + 128
XL = FL + 128
LDS_BYTES = 149760
F_Q, F_P, F_V, F_H, F_D, F_E, F_K, F_M, F_B, F_PO, F_NB, F_X, F_W, F_QP = 0, 4, 8, 12, 16, 20, 24, 40, 44, 48, 52, 56, 60, 64
WS_EP, WS_QA, WS_RD, WS_R2, WS_HB, WS_QB, WS_HA, WS_HA2, WS_SIZE = (
    0, 0x1000, 0x22000, 0x23000, 0x30000, 0x50000, 0x80000, 0x180000, 0x280000)
SCALE_LOG2E = 0x3DB8AA3B
SPIN_LDS = 1 << 16
SPIN_MEM = 1 << 14
DPP = "row_mask:0xf bank_mask:0xf"

sB, sWAVE = 2, 3
sG, sC, sW, sTAG = 20, 21, 22, 23
sT0, sT1, sT2, sT3 = 24, 25, 26, 27
WS, RA, RB, RC, RO = 28, 32, 36, 40, 44
sCNT, sVAL = 48, 49
sM1, sM2, sM3 = 50, 52, 54
sROTK, sROTV = 56, 57
sX0, sX1, sX2, sX3 = 58, 59, 60, 61
sPUB, sFIN = 62, 63
sXCC, sMODE, sQO, sVAL2 = 96, 97, 98, 99
vL = 1


class G(Asm):
    def __init__(self, stamps):
        super().__init__()
        self.n = 0
        self.stamps = stamps

    def lab(self, base):
        self.n += 1
        return f"L_{base}_{self.n}"

    def stamp(self, k):
        if self.stamps:
            self(f"s_memrealtime s[{64+2*k}:{65+2*k}]")

    def srd(self, r, lo, hi, nrec):
        self(f"s_mov_b32 s{r}, s{lo}")
        self(f"s_and_b32 s{r+1}, s{hi}, 0xffff")
        self(f"s_mov_b32 s{r+2}, {nrec}")
        self(f"s_mov_b32 s{r+3}, 0x20000")

    def srd_off(self, r, lo, hi, soff, nrec):
        self(f"s_add_u32 s{r}, s{lo}, s{soff}")
        self(f"s_addc_u32 s{r+1}, s{hi}, 0")
        self(f"s_and_b32 s{r+1}, s{r+1}, 0xffff")
        self(f"s_mov_b32 s{r+2}, {nrec}")
        self(f"s_mov_b32 s{r+3}, 0x20000")

    def exec_all(self):
        self("s_mov_b64 exec, -1")

    def exec_pat(self, lo, hi=None):
        hi = lo if hi is None else hi
        self(f"s_mov_b32 exec_lo, {lo:#x}")
        self(f"s_mov_b32 exec_hi, {hi:#x}")

    def signal(self, vaddr, off, vone):
        self("s_mov_b64 exec, 1")
        self(f"ds_add_u32 v{vaddr}, v{vone} offset:{off}")
        self.exec_all()

    def setflag(self, vaddr, off, vone):
        self("s_mov_b64 exec, 1")
        self(f"ds_write_b32 v{vaddr}, v{vone} offset:{off}")
        self.exec_all()

    def spin_lds(self, vaddr, off, target, vt, sleep=1, limit=None):
        L, D = self.lab("spin"), self.lab("spun")
        self(f"s_mov_b32 s{sCNT}, 0")
        self(f"{L}:")
        self(f"ds_read_b32 v{vt}, v{vaddr} offset:{off}")
        self("s_waitcnt lgkmcnt(0)")
        self(f"v_readfirstlane_b32 s{sVAL}, v{vt}")
        self(f"s_cmp_ge_u32 s{sVAL}, {target}")
        self(f"s_cbranch_scc1 {D}")
        self(f"s_add_u32 s{sCNT}, s{sCNT}, 1")
        self(f"s_cmp_lt_u32 s{sCNT}, {limit or SPIN_LDS}")
        if sleep:
            self(f"s_sleep {sleep}")
        self(f"s_cbranch_scc1 {L}")
        self(f"{D}:")

    def tr_addrs(self, dst, base, t0, t1, t2):
        self(f"v_lshrrev_b32 v{t0}, 2, v{vL}")
        self(f"v_and_b32 v{t1}, 7, v{t0}")
        self(f"v_lshrrev_b32 v{t0}, 5, v{vL}")
        self(f"v_lshlrev_b32 v{t0}, 10, v{t0}")
        self(f"v_lshlrev_b32 v{t2}, 7, v{t1}")
        self(f"v_add_u32 v{t0}, v{t0}, v{t2}")
        self(f"v_and_b32 v{t2}, 1, v{vL}")
        self(f"v_lshlrev_b32 v{t2}, 3, v{t2}")
        self(f"v_add_u32 v{t0}, v{t0}, v{t2}")
        self(f"v_add_u32 v{t0}, {base}, v{t0}")
        self(f"v_and_b32 v{t1}, 6, v{t1}")
        self(f"v_bfe_u32 v{t2}, v{vL}, 1, 1")
        self(f"v_or_b32 v{t1}, v{t1}, v{t2}")
        for t in range(4):
            self(f"v_xor_b32 v{t2}, {2*t}, v{t1}")
            self(f"v_lshlrev_b32 v{t2}, 4, v{t2}")
            self(f"v_add_u32 v{dst+t}, v{t0}, v{t2}")

    def rot(self, expr, dst):
        first = True
        for t in expr.split("+"):
            k, v = t.split("*") if "*" in t else ("1", t)
            src = {"c": sC, "w": sW, "g": sG}[v]
            if first:
                self(f"s_mul_i32 s{dst}, s{src}, {k}"); first = False
            else:
                self(f"s_mul_i32 s{sT0}, s{src}, {k}")
                self(f"s_add_u32 s{dst}, s{dst}, s{sT0}")
        self(f"s_and_b32 s{dst}, s{dst}, 15")

    def tag_hash(self):
        self(f"s_mul_i32 s{sTAG}, s{sTAG}, 0x9E3779B1")
        self(f"s_add_u32 s{sTAG}, s{sTAG}, 0x7F4A7C15")

    def allreduce_rows(self, v, t, op):
        self(f"v_mov_b32 v{t}, v{v}")
        self("s_nop 1")
        self(f"v_permlane16_swap_b32 v{v}, v{t}")
        self(f"{op} v{v}, v{v}, v{t}")
        self(f"v_mov_b32 v{t}, v{v}")
        self("s_nop 1")
        self(f"v_permlane32_swap_b32 v{v}, v{t}")
        self(f"{op} v{v}, v{v}, v{t}")


class P:
    depth = 8; depthv = None; ramp = None; trig = 9; rotk = "2*c"; rotv = "c"
    prio_s = 2; prio_l = 0; nt = "nt"; backoff = 4; stamps = False; dbgwg = None
    force_slow = False; swapmap = False; qalways_b = False; fin_pipe = True
    trig_to = 0; cpf = 0; cpf_c = 4; dmaloop = False; pad_entry = 0; hold = -1; wo_at = -1; xnt = ''; spoll = 0; spoll_sleep = 2; hbpo_at = 0; exp_stop = 0; exp_q = 4; exp_qf = 'sc1'; qld = 'nt'; hald = 'sc1'; hb_st = 'sc1'; hb_ld = 'sc1'; fin_delay = 0; hb_po = 'sc1'


def s_role(a, p):
    NT = " " + p.nt if p.nt else ""
    vKG, vJ, vFL, vONE = 2, 3, 4, 5
    vA0, vT0, vT1, vT2 = 6, 7, 8, 9
    vQP, vQPA = 150, 152
    if p.prio_s:
        a(f"s_setprio {p.prio_s}")
    a(f"""
    v_lshrrev_b32 v{vKG}, 4, v{vL}
    v_and_b32 v{vJ}, 15, v{vL}
    v_mov_b32 v{vFL}, {FL}
    v_mov_b32 v{vONE}, 1
    s_getreg_b32 s{sXCC}, hwreg(HW_REG_XCC_ID)
    s_and_b32 s{sXCC}, s{sXCC}, 7
    s_mov_b32 s{sPUB}, 0
    s_mov_b32 s{sQO}, {WS_QA}
    v_lshlrev_b32 v{vQPA}, 3, v{vL}
    s_cmp_lg_u32 s{sW}, 0
    s_cbranch_scc1 L_s_notq
    """)
    vTR, vX, vBF, vACC = 10, 16, 32, 96
    a(f"""
    v_lshrrev_b32 v{vT0}, 3, v{vL}
    v_and_b32 v{vT1}, 6, v{vT0}
    v_and_b32 v{vT2}, 7, v{vL}
    v_xor_b32 v{vT1}, v{vT1}, v{vT2}
    v_lshlrev_b32 v{vT1}, 4, v{vT1}
    v_lshlrev_b32 v{vT0}, 13, v{vT0}
    v_add_u32 v{vA0}, v{vT0}, v{vT1}
    s_lshr_b32 s{sX0}, s{sC}, 3
    s_and_b32 s{sX1}, s{sC}, 7
    s_mul_i32 s{sT0}, s{sX0}, {112*8192}
    s_lshl_b32 s{sT1}, s{sG}, 10
    s_add_u32 s{sT0}, s{sT0}, s{sT1}
    s_lshl_b32 s{sT1}, s{sX1}, 7
    s_add_u32 s{sT0}, s{sT0}, s{sT1}
    s_mul_i32 s{sT2}, s{sX0}, 224
    v_lshlrev_b32 v{vT2}, 4, v{vL}
    s_mov_b32 s{sT3}, 0
    s_waitcnt lgkmcnt(0)
    """)
    a.srd_off(RA, 10, 11, sT0, 111 * 8192 + 128)
    a.srd(RB, 4, 5, 896)
    a(f"s_mov_b32 m0, {XL}")
    a("s_mov_b64 exec, 0x3fff")
    a(f"buffer_load_dwordx4 v{vT2}, s[{RB}:{RB+3}], s{sT2} offen {p.xnt} lds")
    a("s_mov_b64 exec, -1")
    a(f"s_mov_b32 m0, {WL}")
    a("s_nop 0")
    if p.dmaloop:
        LD = a.lab("dma")
        a(f"{LD}:")
        a(f"buffer_load_dwordx4 v{vA0}, s[{RA}:{RA+3}], s{sT3} offen{NT} lds")
        a("s_add_u32 m0, m0, 1024")
        a(f"s_add_u32 s{sT3}, s{sT3}, 65536")
        a(f"s_cmp_lt_u32 s{sT3}, {14*65536}")
        a(f"s_cbranch_scc1 {LD}")
    else:
        for ii in range(14):
            a(f"buffer_load_dwordx4 v{vA0}, s[{RA}:{RA+3}], s{sT3} offen{NT} lds")
            if ii < 13:
                a("s_add_u32 m0, m0, 1024")
                a(f"s_add_u32 s{sT3}, s{sT3}, 65536")
    a.stamp(13)
    a("s_barrier")
    a.stamp(1)
    a(f"s_load_dword s{sTAG}, s[18:19], {WS_EP}")
    a.srd(WS, 18, 19, WS_SIZE)
    a(f"s_mov_b32 s{sT3}, {WL}")
    a.tr_addrs(vTR, f"s{sT3}", vT0, vT1, vT2)
    for r in (vX + 14, vX + 15):
        a(f"v_mov_b32 v{r}, 0")
    for t in range(4):
        a(f"v_mov_b32 v{vBF+16*t+14}, 0")
        a(f"v_mov_b32 v{vBF+16*t+15}, 0")
    a(f"""
    s_mov_b32 s{sM1}, 0xffff0000
    s_mov_b32 s{sM1+1}, 0
    s_mov_b32 s{sM2}, 0
    s_mov_b32 s{sM2+1}, 0xffff
    s_mov_b32 s{sM3}, 0
    s_mov_b32 s{sM3+1}, 0xffff0000
    s_lshl_b32 s{sQO}, s{sG}, 14
    s_lshl_b32 s{sT1}, s{sX0}, 12
    s_add_u32 s{sQO}, s{sQO}, s{sT1}
    s_lshl_b32 s{sT1}, s{sX1}, 9
    s_add_u32 s{sQO}, s{sQO}, s{sT1}
    s_add_u32 s{sQO}, s{sQO}, {WS_QA}
    """)
    vXA = 14
    a(f"v_lshlrev_b32 v{vXA}, 3, v{vKG}")
    a(f"v_add_u32 v{vXA}, {XL}, v{vXA}")
    a.spin_lds(vFL, F_PO, 1, vT0)
    a("s_waitcnt vmcnt(0)")
    if p.hold >= 0:
        a.setflag(vFL, F_W, vONE)
    a.stamp(2)

    def q_reads(t):
        for jj in range(7):
            a(f"ds_read_b64_tr_b16 v[{vBF+16*t+2*jj}:{vBF+16*t+2*jj+1}], v{vTR+t} offset:{2048*jj}")

    def q_mfma(t):
        for J in range(4):
            c = "0" if J == 0 else f"v[{vACC+4*t}:{vACC+4*t+3}]"
            a(f"v_mfma_f32_16x16x32_bf16 v[{vACC+4*t}:{vACC+4*t+3}], v[{vX+4*J}:{vX+4*J+3}], v[{vBF+16*t+4*J}:{vBF+16*t+4*J+3}], {c}")
    for jj in range(7):
        a(f"ds_read_b64 v[{vX+2*jj}:{vX+2*jj+1}], v{vXA} offset:{32*jj}")
    q_reads(0)
    a("s_waitcnt lgkmcnt(7)")
    q_reads(1)
    a("s_waitcnt lgkmcnt(7)"); q_mfma(0)
    q_reads(2)
    a("s_waitcnt lgkmcnt(7)"); q_mfma(1)
    q_reads(3)
    a("s_waitcnt lgkmcnt(7)"); q_mfma(2)
    a("s_waitcnt lgkmcnt(0)"); q_mfma(3)
    a.tag_hash()
    a(f"""
    v_mov_b32 v{vQP+1}, s{sTAG}
    s_mov_b32 s{sPUB}, 1
    v_cndmask_b32 v{vQP}, v{vACC}, v{vACC+4}, s[{sM1}:{sM1+1}]
    v_cndmask_b32 v{vQP}, v{vQP}, v{vACC+8}, s[{sM2}:{sM2+1}]
    s_nop 4
    v_cndmask_b32 v{vQP}, v{vQP}, v{vACC+12}, s[{sM3}:{sM3+1}]
    v_and_b32 v{vQP}, -8, v{vQP}
    v_or_b32 v{vQP}, s{sXCC}, v{vQP}
    buffer_store_dwordx2 v[{vQP}:{vQP+1}], v{vQPA}, s[{WS}:{WS+3}], s{sQO} offen
    """)
    if p.qalways_b:
        a(f"s_add_u32 s{sT0}, s{sQO}, {WS_QB-WS_QA}")
        a(f"buffer_store_dwordx2 v[{vQP}:{vQP+1}], v{vQPA}, s[{WS}:{WS+3}], s{sT0} offen sc1")
        a(f"s_mov_b32 s{sPUB}, 0")
    if p.trig_to:
        a.setflag(vFL, F_QP, vONE)
    a.stamp(3)
    a("s_branch L_s_common")

    vPO = 112
    a("L_s_notq:")
    a(f"""
    s_cmp_lg_u32 s{sW}, 1
    s_cbranch_scc1 L_s_other
    v_lshlrev_b32 v{vT0}, 2, v{vL}
    v_add_u32 v{vT0}, {FL}, v{vT0}
    v_mov_b32 v{vT1}, 0
    s_mov_b32 exec_hi, 0
    ds_write_b32 v{vT0}, v{vT1}
    s_mov_b64 exec, -1
    """)
    for r in range(4):
        a(f"v_mov_b32 v{vPO+r}, -1")
    a(f"""
    v_lshrrev_b32 v{vT0}, 3, v{vL}
    v_and_b32 v{vT1}, 7, v{vL}
    v_lshlrev_b32 v{vT1}, 4, v{vT1}
    v_lshlrev_b32 v{vA0}, 12, v{vT0}
    v_add_u32 v{vA0}, v{vA0}, v{vT1}
    v_lshlrev_b32 v{vT0}, 13, v{vT0}
    v_add_u32 v{vT0}, v{vT0}, v{vT1}
    s_lshl_b32 s{sX0}, s{sG}, 17
    s_lshl_b32 s{sT1}, s{sC}, 7
    s_add_u32 s{sX0}, s{sX0}, s{sT1}
    s_add_u32 s{sX0}, s{sX0}, {WS_HA}
    s_and_b32 s{sT2}, s{sC}, 3
    s_lshl_b32 s{sX1}, s{sT2}, 15
    s_lshr_b32 s{sT1}, s{sC}, 2
    s_lshl_b32 s{sT3}, s{sG}, 3
    s_add_u32 s{sT1}, s{sT1}, s{sT3}
    s_lshl_b32 s{sT1}, s{sT1}, 7
    s_add_u32 s{sX1}, s{sX1}, s{sT1}
    s_add_u32 s{sX1}, s{sX1}, {WS_HB}
    s_waitcnt lgkmcnt(0)
    """)
    a.srd(WS, 18, 19, WS_SIZE)
    a(f"s_load_dword s{sTAG}, s[18:19], {WS_EP}")
    for i in range(4):
        a(f"buffer_store_dwordx4 v[{vPO}:{vPO+3}], v{vA0}, s[{WS}:{WS+3}], s{sX0} offen")
        if i < 3:
            a(f"s_add_u32 s{sX0}, s{sX0}, 32768")
    def hb_poison():
        a(f"""
        s_cmp_eq_u32 s{sT2}, 3
        s_cselect_b32 exec_lo, 0xffff, -1
        s_mov_b32 exec_hi, 0
        buffer_store_dwordx4 v[{vPO}:{vPO+3}], v{vT0}, s[{WS}:{WS+3}], s{sX1} offen {p.hb_po}
        s_mov_b64 exec, -1
        """)
    if p.hbpo_at == 2:
        a(f"s_add_u32 s{sM1}, s18, s{sX1}")
        a(f"s_addc_u32 s{sM1+1}, s19, 0")
        for i in range(4):
            if i >= 2:
                a(f"s_cmp_eq_u32 s{sT2}, 3")
                a(f"s_cselect_b32 s{sVAL}, 0, {8192*i}")
                a(f"s_load_dword s{88+i}, s[{sM1}:{sM1+1}], s{sVAL}")
            else:
                a(f"s_load_dword s{88+i}, s[{sM1}:{sM1+1}], {8192*i}")
    if p.hbpo_at == 0:
        hb_poison()
    a("s_barrier")
    if p.hbpo_at == 0:
        a("s_waitcnt vmcnt(1) lgkmcnt(0)")
        a.signal(vFL, F_PO, vONE)
    else:
        a("s_waitcnt vmcnt(0) lgkmcnt(0)")
        a.signal(vFL, F_PO, vONE)
        hb_poison()
    a.tag_hash()
    a(f"""
    s_mov_b64 exec, 1
    v_mov_b32 v8, 0
    v_mov_b32 v9, s{sTAG}
    v_mov_b32 v{vA0}, 0
    s_lshl_b32 s{sT0}, s{sG}, 8
    s_lshl_b32 s{sT1}, s{sC}, 3
    s_add_u32 s{sT0}, s{sT0}, s{sT1}
    s_add_u32 s{sT0}, s{sT0}, {WS_RD}
    s_waitcnt vmcnt(0)
    buffer_store_dwordx2 v[8:9], v{vA0}, s[{WS}:{WS+3}], s{sT0} offen sc1
    s_mov_b64 exec, -1
    """)
    a.stamp(3)
    a("s_branch L_s_common")
    a("L_s_other:")
    if p.cpf:
        LPF = a.lab("pf")
        a(f"s_cmp_lg_u32 s{sW}, 2")
        a(f"s_cbranch_scc1 {LPF}")
        a(f"s_cmp_ge_u32 s{sC}, {p.cpf_c}")
        a(f"s_cbranch_scc1 {LPF}")
        a(f"s_getpc_b64 s[{sM1}:{sM1+1}]")
        a("L_pc:")
        a(f"s_sub_u32 s{sM1}, s{sM1}, L_pc-{KN}")
        a(f"s_subb_u32 s{sM1+1}, s{sM1+1}, 0")
        a(f"s_mov_b32 s{RC}, s{sM1}")
        a(f"s_and_b32 s{RC+1}, s{sM1+1}, 0xffff")
        a(f"s_mov_b32 s{RC+2}, L_end+4-{KN}")
        a(f"s_mov_b32 s{RC+3}, 0x20000")
        a(f"v_lshlrev_b32 v{vT0}, 7, v{vL}")
        for i in range(p.cpf):
            a(f"buffer_load_dword v{vT1}, v{vT0}, s[{RC}:{RC+3}], 0 offen")
            if i + 1 < p.cpf:
                a(f"v_add_u32 v{vT0}, 8192, v{vT0}")
        a(f"{LPF}:")
    a("s_waitcnt lgkmcnt(0)")
    a(f"s_load_dword s{sTAG}, s[18:19], {WS_EP}")
    a.srd(WS, 18, 19, WS_SIZE)
    a("s_barrier")
    a("s_waitcnt lgkmcnt(0)")
    a.tag_hash()

    a("L_s_common:")
    if p.exp_stop == 1:
        a("s_branch L_exp_exit")
    vG, vGA, vEA = 16, 10, 148
    vRD = 146
    a.rot(p.rotk, sROTK)
    a(f"s_and_b32 s{sROTK}, s{sROTK}, 14")
    a(f"""
    v_lshlrev_b32 v{vGA}, 4, v{vL}
    s_lshl_b32 s{sX0}, s{sG}, 14
    s_lshl_b32 s{sT0}, s{sW}, 10
    s_add_u32 s{sX0}, s{sX0}, s{sT0}
    s_add_u32 s{sX0}, s{sX0}, {WS_QA}
    """)
    a(f"""
    s_lshr_b32 s{sT0}, s{sB}, 3
    v_and_b32 v{vT0}, 7, v{vL}
    v_lshlrev_b32 v{vT0}, 2, v{vT0}
    v_add_u32 v{vT0}, s{sT0}, v{vT0}
    v_lshlrev_b32 v{vT0}, 3, v{vT0}
    v_lshrrev_b32 v{vT1}, 3, v{vL}
    v_lshlrev_b32 v{vT1}, 8, v{vT1}
    v_add_u32 v{vT0}, v{vT0}, v{vT1}
    v_add_u32 v{vEA}, {WS_RD}, v{vT0}
    s_cmp_lt_u32 s{sB}, 28
    s_cselect_b32 s{sT0}, 1, 0
    s_cmp_eq_u32 s{sW}, 3
    s_cselect_b32 s{sFIN}, s{sT0}, 0
    """)
    vQ, vK, vKA, vD, vS, vP, vQF = 16, 48, 112, 120, 128, 136, 144
    a(f"""
    v_and_b32 v{vT0}, 1, v{vJ}
    v_lshlrev_b32 v{vT0}, 9, v{vT0}
    v_lshlrev_b32 v{vT1}, 4, v{vKG}
    v_add_u32 v{vT0}, v{vT0}, v{vT1}
    v_add_u32 v{vQF}, {QL}, v{vT0}
    v_xor_b32 v{vT0}, v{vKG}, v{vJ}
    v_lshlrev_b32 v{vT0}, 4, v{vT0}
    v_lshlrev_b32 v{vT1}, 9, v{vJ}
    s_lshl_b32 s{sT0}, s{sW}, 14
    v_add_u32 v{vT1}, s{sT0}, v{vT1}
    """)
    for J in range(8):
        a(f"v_xor_b32 v{vT2}, {J<<6}, v{vT0}")
        a(f"v_add_u32 v{vKA+J}, v{vT1}, v{vT2}")
    if p.trig_to:
        a.spin_lds(vFL, F_QP, 1, vT0)
    if p.trig:
        a.spin_lds(vFL, F_H, 4, vT0, limit=p.trig_to or None)
    if p.spoll:
        LP, LPD = a.lab("sp"), a.lab("spd")
        a(f"s_add_u32 s{sM2}, s18, s{sX0}")
        a(f"s_addc_u32 s{sM2+1}, s19, 0")
        a(f"s_mov_b32 s{sCNT}, 0")
        a(f"{LP}:")
        for rb in range(4):
            for h in range(2):
                a(f"s_load_dword s{88+2*rb+h}, s[{sM2}:{sM2+1}], {4096*rb+512*h+508} glc")
        a("s_waitcnt lgkmcnt(0)")
        a(f"s_xor_b32 s{sVAL}, s88, s{sTAG}")
        for k in range(1, 8):
            a(f"s_xor_b32 s{88+k}, s{88+k}, s{sTAG}")
            a(f"s_or_b32 s{sVAL}, s{sVAL}, s{88+k}")
        a(f"s_cmp_eq_u32 s{sVAL}, 0")
        a(f"s_cbranch_scc1 {LPD}")
        a(f"s_add_u32 s{sCNT}, s{sCNT}, 1")
        a(f"s_cmp_lt_u32 s{sCNT}, {p.spoll}")
        a(f"s_sleep {p.spoll_sleep}")
        a(f"s_cbranch_scc1 {LP}")
        a(f"{LPD}:")
        if p.stamps:
            for r in range(88, 96):
                a(f"s_mov_b32 s{r}, 0")
    a.stamp(4)
    LQ, LQD, LQU, LQN = a.lab("qg"), a.lab("qgd"), a.lab("qgu"), a.lab("qgn")

    def publish_b():
        lab = a.lab("pub")
        a(f"s_cmp_eq_u32 s{sPUB}, 0")
        a(f"s_cbranch_scc1 {lab}")
        a(f"s_add_u32 s{sT0}, s{sQO}, {WS_QB-WS_QA}")
        a(f"buffer_store_dwordx2 v[{vQP}:{vQP+1}], v{vQPA}, s[{WS}:{WS+3}], s{sT0} offen sc1")
        a(f"s_mov_b32 s{sPUB}, 0")
        a(f"{lab}:")
    a(f"s_mov_b32 s{sCNT}, 0")
    a(f"s_mov_b32 s{sX1}, s{sX0}")
    a(f"{LQ}:")
    a(f"s_add_u32 s{sX2}, s{sX1}, 4096")
    a(f"s_add_u32 s{sX3}, s{sX1}, 8192")
    a(f"s_add_u32 s{sT3}, s{sX1}, 12288")
    for r, sr in enumerate((sX1, sX2, sX3, sT3)[:p.exp_q]):
        a(f"buffer_load_dwordx4 v[{vG+4*r}:{vG+4*r+3}], v{vGA}, s[{WS}:{WS+3}], s{sr} offen {p.qld}")
    if p.exp_q < 4:
        a("s_waitcnt vmcnt(0)")
        a(f"s_branch {LQD}")
    a(f"""
    s_waitcnt vmcnt(0)
    v_max3_u32 v{vT0}, v{vG+1}, v{vG+3}, v{vG+5}
    v_min3_u32 v{vT1}, v{vG+1}, v{vG+3}, v{vG+5}
    v_max3_u32 v{vT0}, v{vT0}, v{vG+7}, v{vG+9}
    v_min3_u32 v{vT1}, v{vT1}, v{vG+7}, v{vG+9}
    v_max3_u32 v{vT0}, v{vT0}, v{vG+11}, v{vG+13}
    v_min3_u32 v{vT1}, v{vT1}, v{vG+11}, v{vG+13}
    v_max_u32 v{vT0}, v{vT0}, v{vG+15}
    v_min_u32 v{vT1}, v{vT1}, v{vG+15}
    v_xor_b32 v{vT0}, s{sTAG}, v{vT0}
    v_xor_b32 v{vT1}, s{sTAG}, v{vT1}
    v_or_b32 v{vT0}, v{vT0}, v{vT1}
    v_cmp_ne_u32 vcc, 0, v{vT0}
    s_cbranch_vccz {LQD}
    s_add_u32 s{sCNT}, s{sCNT}, 1
    s_cmp_lt_u32 s{sCNT}, 3
    s_cbranch_scc1 {LQN}
    """)
    a.setflag(vFL, F_NB, vONE)
    publish_b()
    a(f"""
    s_and_b32 s{sT0}, s{sCNT}, 1
    s_mul_i32 s{sT0}, s{sT0}, {WS_QB-WS_QA}
    s_add_u32 s{sX1}, s{sX0}, s{sT0}
    {LQN}:
    s_cmp_lt_u32 s{sCNT}, {SPIN_MEM}
    s_sleep {p.backoff}
    s_cbranch_scc1 {LQ}
    {LQD}:
    """)
    if p.stamps:
        a("s_waitcnt lgkmcnt(0)")
        a(f"s_mul_i32 s90, s{sCNT}, 100")
        a("s_add_u32 s90, s90, s64")
        a("s_addc_u32 s91, s65, 0")
    a(f"""
    v_or3_b32 v{vT0}, v{vG}, v{vG+2}, v{vG+4}
    v_bitop3_b32 v{vT1}, v{vG}, v{vG+2}, v{vG+4} bitop3:0x80
    v_or3_b32 v{vT0}, v{vT0}, v{vG+6}, v{vG+8}
    v_bitop3_b32 v{vT1}, v{vT1}, v{vG+6}, v{vG+8} bitop3:0x80
    v_or3_b32 v{vT0}, v{vT0}, v{vG+10}, v{vG+12}
    v_bitop3_b32 v{vT1}, v{vT1}, v{vG+10}, v{vG+12} bitop3:0x80
    v_or_b32 v{vT0}, v{vT0}, v{vG+14}
    v_and_b32 v{vT1}, v{vT1}, v{vG+14}
    v_xor_b32 v{vT0}, s{sXCC}, v{vT0}
    v_xor_b32 v{vT1}, s{sXCC}, v{vT1}
    v_or_b32 v{vT0}, v{vT0}, v{vT1}
    v_and_b32 v{vT0}, 7, v{vT0}
    v_cmp_ne_u32 vcc, 0, v{vT0}
    v_add_f32 v{vG}, v{vG}, v{vG+4}
    v_add_f32 v{vG+2}, v{vG+2}, v{vG+6}
    v_add_f32 v{vG+8}, v{vG+8}, v{vG+12}
    v_add_f32 v{vG+10}, v{vG+10}, v{vG+14}
    v_add_f32 v{vG}, v{vG}, v{vG+8}
    v_add_f32 v{vG+2}, v{vG+2}, v{vG+10}
    v_cvt_pk_bf16_f32 v{vT0}, v{vG}, v{vG+2}
    v_lshlrev_b32 v{vT1}, 2, v{vL}
    s_lshl_b32 s{sT0}, s{sW}, 8
    s_add_u32 s{sT0}, s{sT0}, {QL}
    v_add_u32 v{vT1}, s{sT0}, v{vT1}
    ds_write_b32 v{vT1}, v{vT0}
    s_cbranch_vccz {LQU}
    """)
    a.setflag(vFL, F_M, vONE)
    a(f"{LQU}:")
    if p.force_slow:
        a.setflag(vFL, F_M, vONE)
    a.signal(vFL, F_Q, vONE)
    LNR = a.lab("nord")
    a(f"s_cmp_eq_u32 s{sFIN}, 0")
    a(f"s_cbranch_scc1 {LNR}")
    a(f"buffer_load_dwordx2 v[{vRD}:{vRD+1}], v{vEA}, s[{WS}:{WS+3}], 0 offen sc1")
    a(f"{LNR}:")
    a.stamp(5)
    if p.exp_stop == 2:
        a("s_branch L_exp_exit")

    a(f"s_lshl_b32 s{sT0}, s{sW}, 2")
    a(f"v_add_u32 v{vT0}, s{sT0}, v{vFL}")
    a.spin_lds(vT0, F_K, 1, vT2)
    for tt in range(2):
        for J in range(8):
            if tt == 1 and J == 7:
                a("s_waitcnt lgkmcnt(8)")
            a(f"ds_read_b128 v[{vK+32*tt+4*J}:{vK+32*tt+4*J+3}], v{vKA+J} offset:{KL+8192*tt}")
    LW, LWD = a.lab("qw"), a.lab("qwd")
    a(f"s_mov_b32 s{sCNT}, 0")
    a(f"{LW}:")
    a(f"ds_read_b32 v{vT1}, v{vFL} offset:{F_Q}")
    a(f"ds_read_b32 v{vT2}, v{vFL} offset:{F_NB}")
    a("s_waitcnt lgkmcnt(0)")
    a(f"v_readfirstlane_b32 s{sVAL}, v{vT1}")
    a(f"v_readfirstlane_b32 s{sVAL2}, v{vT2}")
    a(f"s_cmp_ge_u32 s{sVAL}, 4")
    a(f"s_cbranch_scc1 {LWD}")
    LW2 = a.lab("qw2")
    a(f"s_cmp_eq_u32 s{sVAL2}, 0")
    a(f"s_cbranch_scc1 {LW2}")
    publish_b()
    a(f"{LW2}:")
    a(f"s_add_u32 s{sCNT}, s{sCNT}, 1")
    a(f"s_cmp_lt_u32 s{sCNT}, {SPIN_LDS}")
    a("s_sleep 1")
    a(f"s_cbranch_scc1 {LW}")
    a(f"{LWD}:")
    a(f"ds_read_b32 v149, v{vFL} offset:{F_M}")
    for J in range(8):
        a(f"ds_read_b128 v[{vQ+4*J}:{vQ+4*J+3}], v{vQF} offset:{64*J}")
    a.stamp(6)
    for J in range(8):
        a(f"s_waitcnt lgkmcnt({7-J})")
        for tt in range(2):
            c = "0" if J == 0 else f"v[{vD+4*tt}:{vD+4*tt+3}]"
            a(f"v_mfma_f32_16x16x32_bf16 v[{vD+4*tt}:{vD+4*tt+3}], v[{vK+32*tt+4*J}:{vK+32*tt+4*J+3}], v[{vQ+4*J}:{vQ+4*J+3}], {c}")
    vPA0, vPA1, vSMA, vSMW = 10, 11, 14, 15
    vMX, vSUM = 12, 13
    a(f"""
    v_readfirstlane_b32 s{sMODE}, v149
    v_lshlrev_b32 v{vT0}, 1, v{vKG}
    v_add_u32 v{vT0}, s{sROTK}, v{vT0}
    v_add_u32 v{vT1}, 8, v{vT0}
    v_and_b32 v{vT0}, 15, v{vT0}
    v_and_b32 v{vT1}, 15, v{vT1}
    v_lshlrev_b32 v{vT0}, 2, v{vT0}
    v_lshlrev_b32 v{vT1}, 2, v{vT1}
    v_and_b32 v{vT2}, 1, v{vJ}
    v_lshlrev_b32 v{vSMA}, 4, v{vT2}
    v_add_u32 v{vSMA}, {SM}, v{vSMA}
    s_lshl_b32 s{sT0}, s{sW}, 2
    v_add_u32 v{vSMW}, s{sT0}, v{vSMA}
    v_lshlrev_b32 v{vT2}, 8, v{vT2}
    s_lshl_b32 s{sT0}, s{sW}, 6
    s_add_u32 s{sT0}, s{sT0}, {PL}
    v_add_u32 v{vT2}, s{sT0}, v{vT2}
    v_add_u32 v{vPA0}, v{vT2}, v{vT0}
    v_add_u32 v{vPA1}, v{vT2}, v{vT1}
    s_mov_b32 s{sT1}, 0xffff0000
    s_mov_b32 s{sT2}, {SCALE_LOG2E:#x}
    """)
    for e in range(4):
        a(f"v_cvt_pk_bf16_f32 v{vP+e}, v{vD+2*e}, v{vD+2*e+1}")
    for e in range(4):
        a(f"v_lshlrev_b32 v{vS+2*e}, 16, v{vP+e}")
        a(f"v_and_b32 v{vS+2*e+1}, s{sT1}, v{vP+e}")
    a(f"""
    v_max3_f32 v{vMX}, v{vS}, v{vS+1}, v{vS+2}
    v_max3_f32 v{vT1}, v{vS+3}, v{vS+4}, v{vS+5}
    v_max3_f32 v{vMX}, v{vMX}, v{vS+6}, v{vS+7}
    v_max_f32 v{vMX}, v{vMX}, v{vT1}
    """)
    a.allreduce_rows(vMX, vT0, "v_max_f32")
    a("s_mov_b64 exec, 3")
    a(f"ds_write_b32 v{vSMW}, v{vMX}")
    a("s_mov_b64 exec, 1")
    a(f"ds_add_u32 v{vFL}, v{vONE} offset:{F_X}")
    a.exec_all()
    a.spin_lds(vFL, F_X, 4, vT0, sleep=0)
    a(f"ds_read_b128 v[16:19], v{vSMA}")
    a("s_waitcnt lgkmcnt(0)")
    a("v_max3_f32 v16, v16, v17, v18")
    a("v_max_f32 v16, v16, v19")
    a(f"v_mul_f32 v{vMX}, s{sT2}, v16")
    for e in range(8):
        a(f"v_fma_f32 v{vP+e}, v{vS+e}, s{sT2}, -v{vMX}")
    for e in range(8):
        a(f"v_exp_f32 v{vP+e}, v{vP+e}")
    a(f"""
    s_nop 0
    v_cvt_pk_bf16_f32 v16, v{vP}, v{vP+1}
    v_cvt_pk_bf16_f32 v17, v{vP+2}, v{vP+3}
    v_cvt_pk_bf16_f32 v18, v{vP+4}, v{vP+5}
    v_cvt_pk_bf16_f32 v19, v{vP+6}, v{vP+7}
    v_add_f32 v{vT0}, v{vP}, v{vP+1}
    v_add_f32 v{vT1}, v{vP+2}, v{vP+3}
    v_add_f32 v{vT2}, v{vP+4}, v{vP+5}
    v_add_f32 v{vSUM}, v{vP+6}, v{vP+7}
    """)
    a.exec_pat(0x00030003)
    a(f"ds_write_b64 v{vPA0}, v[16:17]")
    a(f"ds_write_b64 v{vPA1}, v[18:19]")
    a.exec_all()
    a(f"""
    v_add_f32 v{vT0}, v{vT0}, v{vT1}
    v_add_f32 v{vSUM}, v{vSUM}, v{vT2}
    v_add_f32 v{vSUM}, v{vSUM}, v{vT0}
    """)
    a.allreduce_rows(vSUM, vT0, "v_add_f32")
    a("s_mov_b64 exec, 3")
    a(f"ds_write_b32 v{vSMW}, v{vSUM} offset:{SS-SM}")
    a("s_mov_b64 exec, 1")
    a(f"ds_add_u32 v{vFL}, v{vONE} offset:{F_P}")
    a.exec_all()
    a.stamp(7)
    if p.exp_stop == 3:
        a("s_branch L_exp_exit")

    LNS, LR, LRD = a.lab("nordc"), a.lab("rd"), a.lab("rdd")
    a(f"s_cmp_eq_u32 s{sFIN}, 0")
    a(f"s_cbranch_scc1 {LNS}")
    a(f"s_mov_b32 s{sCNT}, 0")
    a(f"{LR}:")
    a(f"""
    s_waitcnt vmcnt(0)
    v_cmp_ne_u32 vcc, s{sTAG}, v{vRD+1}
    s_cbranch_vccz {LNS}
    s_add_u32 s{sCNT}, s{sCNT}, 1
    s_cmp_lt_u32 s{sCNT}, {SPIN_MEM}
    s_cbranch_scc0 {LNS}
    s_sleep {p.backoff}
    buffer_load_dwordx2 v[{vRD}:{vRD+1}], v{vEA}, s[{WS}:{WS+3}], 0 offen sc1
    s_branch {LR}
    {LNS}:
    """)
    LSL, LS2, LR2, LR2D = a.lab("slowend"), a.lab("slow2"), a.lab("r2"), a.lab("r2d")
    a(f"""
    s_cmp_eq_u32 s{sMODE}, 0
    s_cbranch_scc1 {LSL}
    s_cmp_lg_u32 s{sW}, 1
    s_cbranch_scc1 {LS2}
    v_mov_b32 v16, -1
    v_mov_b32 v17, -1
    v_mov_b32 v18, -1
    v_mov_b32 v19, -1
    v_lshrrev_b32 v{vT0}, 3, v{vL}
    v_and_b32 v{vT1}, 7, v{vL}
    v_lshlrev_b32 v{vT1}, 4, v{vT1}
    v_lshlrev_b32 v{vT0}, 12, v{vT0}
    v_add_u32 v{vT0}, v{vT0}, v{vT1}
    s_lshl_b32 s{sT0}, s{sG}, 17
    s_lshl_b32 s{sT1}, s{sC}, 7
    s_add_u32 s{sT0}, s{sT0}, s{sT1}
    s_add_u32 s{sT0}, s{sT0}, {WS_HA2}
    """)
    for i in range(4):
        a(f"buffer_store_dwordx4 v[16:19], v{vT0}, s[{WS}:{WS+3}], s{sT0} offen sc1")
        if i < 3:
            a(f"s_add_u32 s{sT0}, s{sT0}, 32768")
    a("s_waitcnt vmcnt(0)")
    a.signal(vFL, F_B, vONE)
    a(f"""
    s_mov_b64 exec, 1
    v_mov_b32 v16, 0
    v_mov_b32 v17, s{sTAG}
    v_mov_b32 v{vT0}, 0
    s_lshl_b32 s{sT0}, s{sG}, 8
    s_lshl_b32 s{sT1}, s{sC}, 3
    s_add_u32 s{sT0}, s{sT0}, s{sT1}
    s_add_u32 s{sT0}, s{sT0}, {WS_R2}
    buffer_store_dwordx2 v[16:17], v{vT0}, s[{WS}:{WS+3}], s{sT0} offen sc1
    s_mov_b64 exec, -1
    s_branch {LSL}
    {LS2}:
    s_cmp_lg_u32 s{sW}, 2
    s_cbranch_scc1 {LSL}
    v_and_b32 v{vT0}, 31, v{vL}
    v_lshlrev_b32 v{vT0}, 3, v{vT0}
    s_lshl_b32 s{sT0}, s{sG}, 8
    s_add_u32 s{sT0}, s{sT0}, {WS_R2}
    s_mov_b32 s{sCNT}, 0
    {LR2}:
    buffer_load_dwordx2 v[16:17], v{vT0}, s[{WS}:{WS+3}], s{sT0} offen sc1
    s_waitcnt vmcnt(0)
    v_cmp_ne_u32 vcc, s{sTAG}, v17
    s_cbranch_vccz {LR2D}
    s_add_u32 s{sCNT}, s{sCNT}, 1
    s_cmp_lt_u32 s{sCNT}, {SPIN_MEM}
    s_sleep {p.backoff}
    s_cbranch_scc1 {LR2}
    {LR2D}:
    """)
    a.signal(vFL, F_E, vONE)
    a(f"{LSL}:")

    vSA, vO0, vO1, vWA0, vWA1, vHA, vOS, vOB, vHB = 10, 11, 14, 15, 16, 17, 18, 19, 20
    vST, vFA, vFB = 22, 26, 27
    a(f"""
    v_lshlrev_b32 v{vT0}, 1, v{vKG}
    v_xor_b32 v{vT0}, v{vT0}, v{vJ}
    v_lshlrev_b32 v{vT0}, 4, v{vT0}
    v_mul_u32_u24 v{vT1}, 896, v{vKG}
    v_add_u32 v{vO0}, v{vT0}, v{vT1}
    v_xor_b32 v{vT0}, 128, v{vT0}
    v_add_u32 v{vO1}, v{vT0}, v{vT1}
    s_lshl_b32 s{sT0}, s{sG}, 9
    s_lshr_b32 s{sT1}, s{sC}, 2
    s_lshl_b32 s{sT1}, s{sT1}, 6
    s_add_u32 s{sT0}, s{sT0}, s{sT1}
    s_mul_i32 s{sT0}, s{sT0}, 896
    s_and_b32 s{sT1}, s{sC}, 3
    s_lshl_b32 s{sT1}, s{sT1}, 8
    s_add_u32 s{sT0}, s{sT0}, s{sT1}
    s_add_u32 s{RC}, s12, s{sT0}
    s_addc_u32 s{RC+1}, s13, 0
    s_and_b32 s{RC+1}, s{RC+1}, 0xffff
    s_sub_u32 s{RC+2}, 3670016, s{sT0}
    s_mov_b32 s{RC+3}, 0x20000
    """)
    a.spin_lds(vFL, F_V, 4, vT2)
    a.stamp(8)
    a(f"s_lshl_b32 s{sT0}, s{sW}, 12")
    a(f"s_add_u32 s{sT0}, s{sT0}, {WL}")
    a(f"s_mov_b32 m0, s{sT0}")
    a(f"s_mul_i32 s{sT1}, s{sW}, {16*896}")
    for u in range(4):
        a(f"buffer_load_dwordx4 v{vO1 if u & 1 else vO0}, s[{RC}:{RC+3}], s{sT1} offen{NT} lds")
        if u < 3:
            a("s_add_u32 m0, m0, 1024")
            a(f"s_add_u32 s{sT1}, s{sT1}, {4*896}")
    a(f"""
    v_lshrrev_b32 v{vT0}, 2, v{vL}
    v_lshlrev_b32 v{vT1}, 8, v{vT0}
    v_and_b32 v{vT0}, 7, v{vT0}
    v_lshlrev_b32 v{vT0}, 1, v{vT0}
    v_bfe_u32 v{vT2}, v{vL}, 1, 1
    v_xor_b32 v{vT0}, v{vT0}, v{vT2}
    v_and_b32 v{vT2}, 1, v{vL}
    v_lshlrev_b32 v{vT2}, 3, v{vT2}
    v_add_u32 v{vT1}, v{vT1}, v{vT2}
    v_add_u32 v{vT1}, {WL}, v{vT1}
    s_lshl_b32 s{sT0}, s{sW}, 2
    v_xor_b32 v{vT2}, s{sT0}, v{vT0}
    v_lshlrev_b32 v{vT2}, 4, v{vT2}
    v_add_u32 v{vWA0}, v{vT1}, v{vT2}
    s_add_u32 s{sT0}, s{sT0}, 2
    v_xor_b32 v{vT2}, s{sT0}, v{vT0}
    v_lshlrev_b32 v{vT2}, 4, v{vT2}
    v_add_u32 v{vWA1}, v{vT1}, v{vT2}
    v_lshrrev_b32 v{vT0}, 2, v{vL}
    v_lshlrev_b32 v{vT0}, 7, v{vT0}
    v_add_u32 v{vSA}, 64, v{vT0}
    v_and_b32 v{vT1}, 3, v{vL}
    v_lshlrev_b32 v{vT1}, 4, v{vT1}
    v_add_u32 v{vHA}, v{vT0}, v{vT1}
    v_and_b32 v{vT0}, 3, v{vL}
    v_lshlrev_b32 v{vT0}, 2, v{vT0}
    v_add_u32 v{vT0}, v{vT0}, v{vKG}
    v_lshlrev_b32 v{vT0}, 1, v{vT0}
    v_mov_b32 v21, v{vT0}
    s_lshl_b32 s{sT0}, s{sW}, 5
    s_add_u32 s{sT0}, s{sT0}, {OL}
    v_add_u32 v{vOS}, s{sT0}, v{vT0}
    v_lshlrev_b32 v{vT0}, 3, v{vKG}
    v_add_u32 v{vOB}, {OL}, v{vT0}
    v_and_b32 v{vT0}, 1, v{vJ}
    v_lshlrev_b32 v{vT0}, 6, v{vT0}
    v_lshlrev_b32 v{vT1}, 4, v{vKG}
    v_add_u32 v{vHB}, v{vT0}, v{vT1}
    s_lshl_b32 s{sX1}, s{sG}, 17
    s_lshr_b32 s{sT0}, s{sC}, 2
    s_lshl_b32 s{sT0}, s{sT0}, 2
    s_add_u32 s{sT0}, s{sT0}, s{sW}
    s_lshl_b32 s{sT0}, s{sT0}, 12
    s_add_u32 s{sX1}, s{sX1}, s{sT0}
    s_mul_i32 s{sT0}, s{sMODE}, {WS_HA2-WS_HA}
    s_add_u32 s{sX1}, s{sX1}, s{sT0}
    s_add_u32 s{sX1}, s{sX1}, {WS_HA}
    s_and_b32 s{sT0}, s{sC}, 3
    s_lshl_b32 s{sT0}, s{sT0}, 2
    s_add_u32 s{sX3}, s{sT0}, s{sW}
    s_lshl_b32 s{sX2}, s{sX3}, 13
    s_lshr_b32 s{sT0}, s{sC}, 2
    s_lshl_b32 s{sT1}, s{sG}, 3
    s_add_u32 s{sT0}, s{sT0}, s{sT1}
    s_lshl_b32 s{sT0}, s{sT0}, 7
    s_add_u32 s{sX2}, s{sX2}, s{sT0}
    s_add_u32 s{sX2}, s{sX2}, {WS_HB}
    s_mov_b32 s{sM1}, 0x00020002
    s_mov_b32 s{sM1+1}, 0x00020002
    s_lshr_b32 s{sX0}, s{sB}, 1
    s_lshl_b32 s{sX0}, s{sX0}, 13
    s_and_b32 s{sT0}, s{sB}, 1
    s_lshl_b32 s{sT0}, s{sT0}, 6
    s_add_u32 s{sX0}, s{sX0}, s{sT0}
    s_add_u32 s{sX0}, s{sX0}, {WS_HB}
    s_add_u32 s{sQO}, s{sX0}, 4096
    s_lshl_b32 s{sVAL2}, s{sB}, 5
    """)
    a.srd(RO, 14, 15, 896)
    LFE = a.lab("fe")
    a(f"s_cmp_eq_u32 s{sMODE}, 0")
    a(f"s_cbranch_scc1 {LFE}")
    a.spin_lds(vFL, F_E, 1, vT2)
    a(f"{LFE}:")
    a.spin_lds(vFL, F_D, 4, vT2, sleep=0)
    a.stamp(9)

    vH, vWF, vOF, vOD = 28, 36, 52, 60

    def ha_loads():
        a(f"buffer_load_dwordx2 v[{vST}:{vST+1}], v{vSA}, s[{WS}:{WS+3}], s{sX1} offen {p.hald}")
        a(f"buffer_load_dwordx2 v[{vST+2}:{vST+3}], v{vSA}, s[{WS}:{WS+3}], s{sX1} offen offset:2048 {p.hald}")
        a(f"buffer_load_dwordx4 v[{vH}:{vH+3}], v{vHA}, s[{WS}:{WS+3}], s{sX1} offen {p.hald}")
        a(f"buffer_load_dwordx4 v[{vH+4}:{vH+7}], v{vHA}, s[{WS}:{WS+3}], s{sX1} offen offset:2048 {p.hald}")
    ha_loads()
    a("s_waitcnt vmcnt(4)")
    a.stamp(14)
    a("s_barrier")
    a.stamp(15)
    for t, va in ((0, vWA0), (1, vWA1)):
        for J in range(2):
            for hf in range(2):
                r = vWF + 8 * t + 4 * J + 2 * hf
                a(f"ds_read_b64_tr_b16 v[{r}:{r+1}], v{va} offset:{8192*J+4096*hf}")
    LH, LHD = a.lab("ha"), a.lab("had")
    a(f"s_mov_b32 s{sCNT}, 0")
    a(f"{LH}:")
    a(f"""
    s_waitcnt vmcnt(0)
    v_max3_u32 v{vT0}, v{vH}, v{vH+1}, v{vH+2}
    v_max3_u32 v{vT1}, v{vH+3}, v{vH+4}, v{vH+5}
    v_max3_u32 v{vT2}, v{vH+6}, v{vH+7}, v{vST}
    v_max3_u32 v{vT0}, v{vT0}, v{vST+1}, v{vST+2}
    v_max3_u32 v{vT1}, v{vT1}, v{vT2}, v{vST+3}
    v_max_u32 v{vT0}, v{vT0}, v{vT1}
    v_cmp_eq_u32 vcc, -1, v{vT0}
    v_max_f32 v{vT0}, v{vST}, v{vST+2}
    s_cbranch_vccz {LHD}
    s_add_u32 s{sCNT}, s{sCNT}, 1
    s_cmp_lt_u32 s{sCNT}, {SPIN_MEM}
    s_cbranch_scc0 {LHD}
    """)
    ha_loads()
    a(f"s_branch {LH}")
    a(f"{LHD}:")
    a.stamp(10)
    a(f"""
    s_nop 0
    v_max_f32_dpp v{vT0}, v{vT0}, v{vT0} row_ror:4 {DPP}
    s_nop 1
    v_max_f32_dpp v{vT0}, v{vT0}, v{vT0} row_ror:8 {DPP}
    """)
    a.allreduce_rows(vT0, vT1, "v_max_f32")
    a(f"""
    v_sub_f32 v{vFA}, v{vST}, v{vT0}
    v_sub_f32 v{vFB}, v{vST+2}, v{vT0}
    v_exp_f32 v{vFA}, v{vFA}
    v_exp_f32 v{vFB}, v{vFB}
    s_nop 0
    v_mul_f32 v{vT0}, v{vFA}, v{vST+1}
    v_fmac_f32 v{vT0}, v{vFB}, v{vST+3}
    """)
    for r in range(4):
        a(f"v_mul_f32 v{vH+r}, v{vFA}, v{vH+r}")
    a(f"v_add_f32_dpp v{vT0}, v{vT0}, v{vT0} row_ror:4 {DPP}")
    for r in range(4):
        a(f"v_fmac_f32 v{vH+r}, v{vFB}, v{vH+4+r}")
    a(f"""
    v_add_f32_dpp v{vT0}, v{vT0}, v{vT0} row_ror:8 {DPP}
    v_permlane16_swap_b32 v{vH}, v{vH+1}
    v_mov_b32 v{vT1}, v{vT0}
    v_permlane16_swap_b32 v{vH+2}, v{vH+3}
    v_add_f32 v{vH}, v{vH}, v{vH+1}
    v_permlane16_swap_b32 v{vT0}, v{vT1}
    v_add_f32 v{vH+2}, v{vH+2}, v{vH+3}
    v_add_f32 v{vT0}, v{vT0}, v{vT1}
    v_mov_b32 v{vT1}, v{vT0}
    v_permlane32_swap_b32 v{vH}, v{vH+2}
    v_add_f32 v{vH}, v{vH}, v{vH+2}
    v_permlane32_swap_b32 v{vT0}, v{vT1}
    v_add_f32 v{vT0}, v{vT0}, v{vT1}
    v_add_f32_dpp v{vH}, v{vH}, v{vH} row_ror:4 {DPP}
    v_rcp_f32 v{vT0}, v{vT0}
    s_nop 0
    v_add_f32_dpp v{vH}, v{vH}, v{vH} row_ror:8 {DPP}
    s_nop 0
    v_mul_f32 v{vH}, v{vH}, v{vT0}
    v_cvt_pk_bf16_f32 v{vH}, v{vH}, v{vH}
    """)
    a.exec_pat(0x000F000F)
    a(f"ds_write_b16 v{vOS}, v{vH}")
    a.exec_all()
    a(f"""
    s_waitcnt lgkmcnt(0)
    s_barrier
    ds_read2_b64 v[{vOF}:{vOF+3}], v{vOB} offset0:0 offset1:4
    ds_read2_b64 v[{vOF+4}:{vOF+7}], v{vOB} offset0:8 offset1:12
    """)
    for J in range(2):
        a(f"s_waitcnt lgkmcnt({1-J})")
        for t in range(2):
            c = "0" if J == 0 else f"v[{vOD+4*t}:{vOD+4*t+3}]"
            a(f"v_mfma_f32_16x16x32_bf16 v[{vOD+4*t}:{vOD+4*t+3}], v[{vWF+8*t+4*J}:{vWF+8*t+4*J+3}], v[{vOF+4*J}:{vOF+4*J+3}], {c}")
    LNB = a.lab("nohb")
    a(f"""
    s_cmp_ge_u32 s{sX3}, 14
    s_cbranch_scc1 {LNB}
    s_nop 5
    """)
    for r in range(4):
        a(f"v_cndmask_b32 v{vOD+r}, v{vOD+r}, v{vOD+4+r}, s[{sM1}:{sM1+1}]")
    a.exec_pat(0x00030003)
    a(f"buffer_store_dwordx4 v[{vOD}:{vOD+3}], v{vHB}, s[{WS}:{WS+3}], s{sX2} offen {p.hb_st}")
    a.exec_all()
    a(f"{LNB}:")
    a.stamp(11)

    a(f"s_cmp_eq_u32 s{sFIN}, 0")
    a("s_cbranch_scc1 L_fin")
    if p.fin_delay:
        a(f"s_sleep {p.fin_delay}")
    sets = (28, 68) if p.fin_pipe else (28,)

    def fb_loads(vF):
        for i in range(4):
            so = sX0 if i < 2 else sQO
            a(f"buffer_load_dwordx4 v[{vF+4*i}:{vF+4*i+3}], v{vHA}, s[{WS}:{WS+3}], s{so} offen offset:{2048*(i & 1)} {p.hb_ld}")

    def fb_check(vF, ok):
        a(f"""
        v_max3_u32 v{vT0}, v{vF}, v{vF+1}, v{vF+2}
        v_max3_u32 v{vT1}, v{vF+3}, v{vF+4}, v{vF+5}
        v_max3_u32 v{vT2}, v{vF+6}, v{vF+7}, v{vF+8}
        v_max3_u32 v{vT0}, v{vT0}, v{vF+9}, v{vF+10}
        v_max3_u32 v{vT1}, v{vT1}, v{vF+11}, v{vF+12}
        v_max3_u32 v{vT2}, v{vT2}, v{vF+13}, v{vF+14}
        v_max3_u32 v{vT0}, v{vT0}, v{vT1}, v{vF+15}
        v_max_u32 v{vT0}, v{vT0}, v{vT2}
        v_cmp_eq_u32 vcc, -1, v{vT0}
        s_cbranch_vccz {ok}
        """)

    def fb_finish(vF):
        for r in range(4):
            a(f"v_add_f32 v{vF+r}, v{vF+r}, v{vF+4+r}")
            a(f"v_add_f32 v{vF+8+r}, v{vF+8+r}, v{vF+12+r}")
        for r in range(4):
            a(f"v_add_f32 v{vF+r}, v{vF+r}, v{vF+8+r}")
        a(f"""
        s_nop 0
        v_permlane16_swap_b32 v{vF}, v{vF+1}
        v_permlane16_swap_b32 v{vF+2}, v{vF+3}
        v_add_f32 v{vF}, v{vF}, v{vF+1}
        v_add_f32 v{vF+2}, v{vF+2}, v{vF+3}
        s_nop 1
        v_permlane32_swap_b32 v{vF}, v{vF+2}
        v_add_f32 v{vF}, v{vF}, v{vF+2}
        s_nop 1
        v_add_f32_dpp v{vF}, v{vF}, v{vF} row_ror:4 {DPP}
        s_nop 1
        v_add_f32_dpp v{vF}, v{vF}, v{vF} row_ror:8 {DPP}
        v_cvt_pk_bf16_f32 v{vF}, v{vF}, v{vF}
        """)
        a.exec_pat(0x000F000F)
        a(f"buffer_store_short v{vF}, v21, s[{RO}:{RO+3}], s{sVAL2} offen")
    LF = a.lab("fb")
    oks = [a.lab("fbok") for _ in sets]
    LEP = a.lab("epoch")
    a(f"s_mov_b32 s{sCNT}, 0")
    if p.fin_pipe:
        fb_loads(sets[0])
        a(f"{LF}:")
        fb_loads(sets[1])
        a("s_waitcnt vmcnt(4)")
        fb_check(sets[0], oks[0])
        fb_loads(sets[0])
        a("s_waitcnt vmcnt(4)")
        fb_check(sets[1], oks[1])
        a(f"s_add_u32 s{sCNT}, s{sCNT}, 1")
        a(f"s_cmp_lt_u32 s{sCNT}, {SPIN_MEM}")
        a(f"s_cbranch_scc1 {LF}")
        a("s_waitcnt vmcnt(0)")
        a(f"{oks[0]}:")
        fb_finish(sets[0])
        a(f"s_branch {LEP}")
        a(f"{oks[1]}:")
        fb_finish(sets[1])
    else:
        a(f"{LF}:")
        fb_loads(sets[0])
        a("s_waitcnt vmcnt(0)")
        fb_check(sets[0], oks[0])
        a(f"s_add_u32 s{sCNT}, s{sCNT}, 1")
        a(f"s_cmp_lt_u32 s{sCNT}, {SPIN_MEM}")
        a(f"s_cbranch_scc1 {LF}")
        a(f"{oks[0]}:")
        fb_finish(sets[0])
    a(f"{LEP}:")
    a(f"""
    s_cmp_lg_u32 s{sB}, 0
    s_cbranch_scc1 L_fin
    s_mov_b64 exec, 1
    v_mov_b32 v{vT1}, s{sTAG}
    v_mov_b32 v{vT2}, 0
    buffer_store_dword v{vT1}, v{vT2}, s[{WS}:{WS+3}], 0 offen sc1
    """)
    a("L_fin:")
    if p.exp_stop:
        a("L_exp_exit:")
    a.exec_all()
    a.stamp(12)
    a("s_branch L_dump" if p.stamps else "s_endpgm")


def l_role(a, p):
    NT = " " + p.nt if p.nt else ""
    vKO, vVO, vTM, vFL, vONE = 2, 3, 4, 5, 6
    vU0, vU1, vU2 = 7, 8, 9
    vTR, vKG, vJ = 10, 14, 15
    vB, vAF, vACC = 16, 80, 112
    vPA, vHS, vSMA = 116, 124, 125
    vM4, vL4 = 128, 132
    if p.prio_l:
        a(f"s_setprio {p.prio_l}")
    a(f"""
    v_lshrrev_b32 v{vU0}, 5, v{vL}
    v_and_b32 v{vU1}, 31, v{vL}
    v_xor_b32 v{vU1}, v{vU1}, v{vU0}
    v_lshlrev_b32 v{vU1}, 4, v{vU1}
    v_lshlrev_b32 v{vU0}, 9, v{vU0}
    v_add_u32 v{vKO}, v{vU0}, v{vU1}
    v_lshrrev_b32 v{vU0}, 3, v{vL}
    v_and_b32 v{vU1}, 6, v{vU0}
    v_and_b32 v{vU2}, 7, v{vL}
    v_xor_b32 v{vU1}, v{vU1}, v{vU2}
    v_lshlrev_b32 v{vU1}, 4, v{vU1}
    v_lshlrev_b32 v{vU0}, 9, v{vU0}
    v_add_u32 v{vVO}, v{vU0}, v{vU1}
    v_mov_b32 v{vFL}, {FL}
    v_mov_b32 v{vONE}, 1
    """)
    a.rot(p.rotk, sROTK)
    a(f"s_and_b32 s{sROTK}, s{sROTK}, 14")
    a.rot(p.rotv, sROTV)
    a(f"""
    s_lshl_b32 s{sX0}, s{sG}, 25
    s_add_u32 s{sX0}, s{sX0}, {(65536-4096)*512}
    s_lshl_b32 s{sT0}, s{sC}, 16
    s_add_u32 s{sX0}, s{sX0}, s{sT0}
    s_lshl_b32 s{sT0}, s{sW}, 14
    s_add_u32 s{sT1}, s{sX0}, s{sT0}
    s_lshl_b32 s{sT2}, s{sW}, 7
    s_add_u32 s{sT3}, s{sX0}, s{sT2}
    s_add_u32 s{sX1}, s{sT0}, {KL}
    s_add_u32 s{sX2}, s{sT0}, {VL}
    s_waitcnt lgkmcnt(0)
    """)
    a.srd_off(RA, 6, 7, sT1, 16384)
    a(f"""
    s_add_u32 s{RB}, s8, s{sT3}
    s_addc_u32 s{RB+1}, s9, 0
    s_and_b32 s{RB+1}, s{RB+1}, 0xffff
    s_sub_u32 s{RB+2}, 65536, s{sT2}
    s_mov_b32 s{RB+3}, 0x20000
    s_barrier
    """)
    a.stamp(1)
    depthv = p.depthv or p.depth

    def dep(idx):
        if idx >= 16:
            return min(depthv, p.depth + (idx - 16) + 1)
        if p.ramp:
            return min(p.depth, p.ramp + max(0, idx - p.ramp + 1) // 2)
        return p.depth

    def k_landed():
        a("s_mov_b64 exec, 1")
        a(f"v_mov_b32 v{vU0}, s{sW}")
        a(f"v_lshlrev_b32 v{vU0}, 2, v{vU0}")
        a(f"v_add_u32 v{vU0}, v{vFL}, v{vU0}")
        a(f"ds_write_b32 v{vU0}, v{vONE} offset:{F_K}")
        a.exec_all()
        a.stamp(2)
    prev = -1
    setup_done = False
    for idx in range(32):
        i = idx & 15
        if idx == p.hold:
            l_setup(a, p, vB, vKG, vJ, vTR, vU0, vU1, vU2, vTM, vACC, vPA, vHS, vSMA)
            setup_done = True
            a.spin_lds(vFL, F_W, 1, vTM)
        d = dep(idx)
        if idx >= d:
            if not setup_done:
                l_setup(a, p, vB, vKG, vJ, vTR, vU0, vU1, vU2, vTM, vACC, vPA, vHS, vSMA)
                setup_done = True
            a(f"s_waitcnt vmcnt({d-1})")
            done = idx - d
            for ev in range(prev + 1, done + 1):
                if p.trig and ev == p.trig - 1:
                    a.signal(vFL, F_H, vONE)
                if ev == 15:
                    k_landed()
            prev = max(prev, done)
        if idx < 16:
            a(f"s_add_u32 s{sT0}, s{sROTK}, {i}")
            a(f"s_and_b32 s{sT0}, s{sT0}, 15")
            a(f"s_lshl_b32 s{sT0}, s{sT0}, 10")
            a(f"s_add_u32 m0, s{sX1}, {1024*i}")
            x = ((2 * i) & 15) << 4
            if x:
                a(f"v_xor_b32 v{vTM}, {x}, v{vKO}")
                a(f"buffer_load_dwordx4 v{vTM}, s[{RA}:{RA+3}], s{sT0} offen{NT} lds")
            else:
                a("s_nop 0")
                a(f"buffer_load_dwordx4 v{vKO}, s[{RA}:{RA+3}], s{sT0} offen{NT} lds")
        else:
            a(f"s_add_u32 s{sT0}, s{sROTV}, {i}")
            a(f"s_and_b32 s{sT0}, s{sT0}, 15")
            a(f"s_add_u32 m0, s{sX2}, {1024*i}")
            a(f"s_lshl_b32 s{sT0}, s{sT0}, 12")
            a(f"buffer_load_dwordx4 v{vVO}, s[{RB}:{RB+3}], s{sT0} offen{NT} lds")
    if p.wo_at < 0:
        a.signal(vFL, F_V, vONE)
    a.stamp(3)
    if prev < 15:
        a("s_waitcnt vmcnt(16)")
        if p.trig and prev < p.trig - 1:
            a.signal(vFL, F_H, vONE)
        k_landed()
    if p.exp_stop not in (1, 2):
        a.spin_lds(vFL, F_P, 4, vTM)
    a.stamp(4)
    a(f"ds_read_b32 v136, v{vFL} offset:{F_M}")
    a(f"ds_read_b128 v[{vM4}:{vM4+3}], v{vSMA}")
    a(f"ds_read_b128 v[{vL4}:{vL4+3}], v{vSMA} offset:{SS-SM}")
    for t in range(4):
        a.exec_pat((3 << (2 * t)) * 0x00010001)
        for k in range(8):
            r = vB + 16 * t + 2 * k
            a(f"ds_read_b64 v[{r}:{r+1}], v{vPA+k}")
        if t == 0:
            a.exec_all()
            a("s_waitcnt lgkmcnt(8)")
            a(f"v_readfirstlane_b32 s{sMODE}, v136" if not p.exp_stop else f"s_mov_b32 s{sMODE}, 0")
            a(f"v_max3_f32 v{vM4}, v{vM4}, v{vM4+1}, v{vM4+2}")
            a(f"v_add_f32 v{vL4}, v{vL4}, v{vL4+1}")
            a(f"v_max_f32 v{vM4}, v{vM4}, v{vM4+3}")
            a(f"v_add_f32 v{vL4+2}, v{vL4+2}, v{vL4+3}")
            a(f"s_mov_b32 s{sT2}, {SCALE_LOG2E:#x}")
            a(f"v_mul_f32 v{vM4}, s{sT2}, v{vM4}")
            a(f"v_add_f32 v{vL4}, v{vL4}, v{vL4+2}")
            a.exec_pat(0xFF00FF00)
            a(f"v_mov_b32 v{vACC}, v{vM4}")
            a(f"v_mov_b32 v{vACC+1}, v{vL4}")
    a.exec_all()
    a.stamp(5)
    for J in range(4):
        a(f"s_waitcnt vmcnt({12-4*J})")
        if J == p.wo_at:
            a.signal(vFL, F_V, vONE)
        if J == 3:
            a.stamp(6)
        s = vAF + 16 * (J & 1)
        for t in range(4):
            for hf in range(2):
                r = s + 4 * t + 2 * hf
                a(f"ds_read_b64_tr_b16 v[{r}:{r+1}], v{vTR+t} offset:{1024*(4*J+2*hf)}")
        for t in range(4):
            a(f"s_waitcnt lgkmcnt({6-2*t})")
            a(f"v_mfma_f32_16x16x32_bf16 v[{vACC}:{vACC+3}], v[{s+4*t}:{s+4*t+3}], v[{vB+16*t+4*J}:{vB+16*t+4*J+3}], v[{vACC}:{vACC+3}]")
    LSS, LSD = a.lab("slowst"), a.lab("std")
    a(f"s_cmp_lg_u32 s{sMODE}, 0")
    a(f"s_cbranch_scc1 {LSS}")
    a("s_nop 5")
    a(f"buffer_store_dwordx4 v[{vACC}:{vACC+3}], v{vHS}, s[{WS}:{WS+3}], s{sX3} offen")
    a(f"{LSD}:")
    a.signal(vFL, F_D, vONE)
    a.stamp(7)
    if not p.exp_stop:
        a("s_barrier")
        a("s_barrier")
    a("s_branch L_dump" if p.stamps else "s_endpgm")
    a(f"{LSS}:")
    a.spin_lds(vFL, F_B, 1, vTM)
    a(f"s_add_u32 s{sX3}, s{sX3}, {WS_HA2-WS_HA}")
    a(f"buffer_store_dwordx4 v[{vACC}:{vACC+3}], v{vHS}, s[{WS}:{WS+3}], s{sX3} offen sc1")
    a(f"s_branch {LSD}")


def l_setup(a, p, vB, vKG, vJ, vTR, vU0, vU1, vU2, vTM, vACC, vPA, vHS, vSMA):
    for r in range(64):
        a(f"v_mov_b32 v{vB+r}, 0")
    for r in range(4):
        a(f"v_mov_b32 v{vACC+r}, 0")
    a(f"v_lshrrev_b32 v{vKG}, 4, v{vL}")
    a(f"v_and_b32 v{vJ}, 15, v{vL}")
    a.tr_addrs(vTR, f"s{sX2}", vU0, vU1, vU2)
    a.srd(WS, 18, 19, WS_SIZE)
    a(f"""
    v_and_b32 v{vU0}, 1, v{vJ}
    v_lshlrev_b32 v{vU0}, 4, v{vU0}
    v_bfe_u32 v{vU1}, v{vJ}, 1, 2
    v_add_u32 v{vU0}, v{vU0}, v{vU1}
    v_lshlrev_b32 v{vU0}, 12, v{vU0}
    v_lshrrev_b32 v{vU1}, 3, v{vJ}
    v_lshlrev_b32 v{vU1}, 2, v{vU1}
    v_add_u32 v{vU1}, v{vU1}, v{vKG}
    v_lshlrev_b32 v{vU1}, 4, v{vU1}
    v_add_u32 v{vHS}, v{vU0}, v{vU1}
    s_lshl_b32 s{sX3}, s{sG}, 17
    s_lshl_b32 s{sT0}, s{sW}, 14
    s_add_u32 s{sX3}, s{sX3}, s{sT0}
    s_lshl_b32 s{sT0}, s{sC}, 7
    s_add_u32 s{sX3}, s{sX3}, s{sT0}
    s_add_u32 s{sX3}, s{sX3}, {WS_HA}
    """)
    a(f"""
    v_lshrrev_b32 v{vU0}, 1, v{vKG}
    v_add_u32 v{vU0}, s{sROTV}, v{vU0}
    v_and_b32 v{vU1}, 1, v{vKG}
    v_lshlrev_b32 v{vU1}, 3, v{vU1}
    v_and_b32 v{vU2}, 1, v{vJ}
    v_lshlrev_b32 v{vTM}, 8, v{vU2}
    v_add_u32 v{vU1}, v{vU1}, v{vTM}
    v_add_u32 v{vU1}, {PL}, v{vU1}
    v_lshlrev_b32 v{vU2}, 4, v{vU2}
    v_add_u32 v{vSMA}, {SM}, v{vU2}
    """)
    for k in range(8):
        a(f"v_add_u32 v{vTM}, {2*k}, v{vU0}")
        a(f"v_and_b32 v{vTM}, 15, v{vTM}")
        a(f"v_lshlrev_b32 v{vTM}, 4, v{vTM}")
        a(f"v_add_u32 v{vPA+k}, v{vTM}, v{vU1}")


def gen(p):
    a = G(p.stamps)
    a(f"""
    s_cmp_ge_u32 s{sB}, 256
    s_cbranch_scc1 L_end
    s_load_dwordx16 s[4:19], s[0:1], 0
    """)
    for i in range(p.pad_entry):
        a(f"s_mov_b32 s{64 + (i & 7)}, s{72 + (i & 7)}")
    a.stamp(0)
    if p.stamps:
        for r in range(66, 96):
            a(f"s_mov_b32 s{r}, 0")
    a(f"""
    v_lshrrev_b32 v2, 6, v0
    v_and_b32 v{vL}, 63, v0
    v_readfirstlane_b32 s{sWAVE}, v2
    {"s_lshr_b32 s%d, s%d, 5" % (sG, sB) if p.swapmap else "s_and_b32 s%d, s%d, 7" % (sG, sB)}
    {"s_and_b32 s%d, s%d, 31" % (sC, sB) if p.swapmap else "s_lshr_b32 s%d, s%d, 3" % (sC, sB)}
    s_and_b32 s{sW}, s{sWAVE}, 3
    s_cmp_ge_u32 s{sWAVE}, 4
    s_cbranch_scc1 L_loader
    """)
    s_role(a, p)
    a("L_loader:")
    l_role(a, p)
    if p.stamps:
        a("L_dump:")
        from stamps import dump
        a("s_waitcnt lgkmcnt(0)")
        if p.dbgwg is None:
            a.srd(WS, 18, 19, 0x40000000)
            dump(a, 16, 8, wave_sreg=f"s{sWAVE}", wg_sreg=f"s{sB}", ws_srd=WS, vt=(200,))
        else:
            a(f"s_cmp_lg_u32 s{sB}, {p.dbgwg}")
            a("s_cbranch_scc1 L_end")
            a.srd(WS, 16, 17, 256)
            a("s_mov_b64 exec, 1")
            a("v_mov_b32 v200, 0")
            a(f"s_cmp_eq_u32 s{sWAVE}, 4")
            a("s_cbranch_scc1 L_dbg_l")
            a(f"s_cmp_lg_u32 s{sWAVE}, 0")
            a("s_cbranch_scc1 L_end")
            for n, k in enumerate((13, 2, 3, 4, 5, 6, 7, 8, 9, 15, 10, 11)):
                a(f"s_sub_u32 s62, s{64+2*k}, s64")
                a("v_mov_b32 v204, s62")
                a(f"buffer_store_dword v204, v200, s[{WS}:{WS+3}], 0 offen offset:{4*n}")
            a("s_branch L_end")
            a("L_dbg_l:")
            for n, k in enumerate((2, 3, 6, 7)):
                a(f"s_sub_u32 s62, s{64+2*k}, s64")
                a("v_mov_b32 v204, s62")
                a(f"buffer_store_dword v204, v200, s[{WS}:{WS+3}], 0 offen offset:{48+4*n}")
    a("L_end:")
    a("s_endpgm")
    return wrap(a.text(), 256, 512, LDS_BYTES, vgpr=216 if p.stamps else 160, sgpr=102)


if __name__ == "__main__":
    import argparse
    ap = argparse.ArgumentParser()
    ap.add_argument("-o", default="k.s")
    for k in [k for k in dir(P) if not k.startswith("_")]:
        v = getattr(P, k)
        if isinstance(v, bool):
            ap.add_argument("--" + k, type=lambda x: x not in ("0", "False"), default=v, nargs="?", const=True)
        elif isinstance(v, int) or v is None:
            ap.add_argument("--" + k, type=int, default=v)
        else:
            ap.add_argument("--" + k, default=v)
    args = ap.parse_args()
    p = P()
    for k in vars(args):
        setattr(p, k, getattr(args, k))
    open(args.o, "w").write(gen(p))
```

```python
from common import *

KL, VL, WL = 0, 65536, 131072
QL = 147456
PL = QL + 1024
SM = PL + 512
SS = SM + 32
OL = SS + 32
FL = OL + 128
XL = FL + 128
LDS_BYTES = 149760
F_Q, F_P, F_V, F_H, F_D, F_E, F_K, F_M, F_B, F_PO, F_NB, F_X = 0, 4, 8, 12, 16, 20, 24, 40, 44, 48, 52, 56
WS_EP, WS_QA, WS_RD, WS_R2, WS_HB, WS_QB, WS_HA, WS_HA2, WS_SIZE = (
    0, 0x1000, 0x22000, 0x23000, 0x30000, 0x50000, 0x80000, 0x180000, 0x280000)
SCALE_LOG2E = 0x3DB8AA3B
SPIN_LDS = 1 << 16
SPIN_MEM = 1 << 14
DPP = "row_mask:0xf bank_mask:0xf"

sB, sWAVE = 2, 3
sG, sC, sW, sTAG = 20, 21, 22, 23
sT0, sT1, sT2, sT3 = 24, 25, 26, 27
WS, RA, RB, RC, RO = 28, 32, 36, 40, 44
sCNT, sVAL = 48, 49
sM1, sM2, sM3 = 50, 52, 54
sROTK, sROTV = 56, 57
sX0, sX1, sX2, sX3 = 58, 59, 60, 61
sPUB, sFIN = 62, 63
sXCC, sMODE, sQO, sVAL2 = 96, 97, 98, 99
vL = 1


class G(Asm):
    def __init__(self, stamps):
        super().__init__()
        self.n = 0
        self.stamps = stamps

    def lab(self, base):
        self.n += 1
        return f"L_{base}_{self.n}"

    def stamp(self, k):
        if self.stamps:
            self(f"s_memrealtime s[{64+2*k}:{65+2*k}]")

    def srd(self, r, lo, hi, nrec):
        self(f"s_mov_b32 s{r}, s{lo}")
        self(f"s_and_b32 s{r+1}, s{hi}, 0xffff")
        self(f"s_mov_b32 s{r+2}, {nrec}")
        self(f"s_mov_b32 s{r+3}, 0x20000")

    def srd_off(self, r, lo, hi, soff, nrec):
        self(f"s_add_u32 s{r}, s{lo}, s{soff}")
        self(f"s_addc_u32 s{r+1}, s{hi}, 0")
        self(f"s_and_b32 s{r+1}, s{r+1}, 0xffff")
        self(f"s_mov_b32 s{r+2}, {nrec}")
        self(f"s_mov_b32 s{r+3}, 0x20000")

    def exec_all(self):
        self("s_mov_b64 exec, -1")

    def exec_pat(self, lo, hi=None):
        hi = lo if hi is None else hi
        self(f"s_mov_b32 exec_lo, {lo:#x}")
        self(f"s_mov_b32 exec_hi, {hi:#x}")

    def signal(self, vaddr, off, vone):
        self("s_mov_b64 exec, 1")
        self(f"ds_add_u32 v{vaddr}, v{vone} offset:{off}")
        self.exec_all()

    def setflag(self, vaddr, off, vone):
        self("s_mov_b64 exec, 1")
        self(f"ds_write_b32 v{vaddr}, v{vone} offset:{off}")
        self.exec_all()

    def spin_lds(self, vaddr, off, target, vt, sleep=1):
        L, D = self.lab("spin"), self.lab("spun")
        self(f"s_mov_b32 s{sCNT}, 0")
        self(f"{L}:")
        self(f"ds_read_b32 v{vt}, v{vaddr} offset:{off}")
        self("s_waitcnt lgkmcnt(0)")
        self(f"v_readfirstlane_b32 s{sVAL}, v{vt}")
        self(f"s_cmp_ge_u32 s{sVAL}, {target}")
        self(f"s_cbranch_scc1 {D}")
        self(f"s_add_u32 s{sCNT}, s{sCNT}, 1")
        self(f"s_cmp_lt_u32 s{sCNT}, {SPIN_LDS}")
        if sleep:
            self(f"s_sleep {sleep}")
        self(f"s_cbranch_scc1 {L}")
        self(f"{D}:")

    def tr_addrs(self, dst, base, t0, t1, t2):
        self(f"v_lshrrev_b32 v{t0}, 2, v{vL}")
        self(f"v_and_b32 v{t1}, 7, v{t0}")
        self(f"v_lshrrev_b32 v{t0}, 5, v{vL}")
        self(f"v_lshlrev_b32 v{t0}, 10, v{t0}")
        self(f"v_lshlrev_b32 v{t2}, 7, v{t1}")
        self(f"v_add_u32 v{t0}, v{t0}, v{t2}")
        self(f"v_and_b32 v{t2}, 1, v{vL}")
        self(f"v_lshlrev_b32 v{t2}, 3, v{t2}")
        self(f"v_add_u32 v{t0}, v{t0}, v{t2}")
        self(f"v_add_u32 v{t0}, {base}, v{t0}")
        self(f"v_and_b32 v{t1}, 6, v{t1}")
        self(f"v_bfe_u32 v{t2}, v{vL}, 1, 1")
        self(f"v_or_b32 v{t1}, v{t1}, v{t2}")
        for t in range(4):
            self(f"v_xor_b32 v{t2}, {2*t}, v{t1}")
            self(f"v_lshlrev_b32 v{t2}, 4, v{t2}")
            self(f"v_add_u32 v{dst+t}, v{t0}, v{t2}")

    def rot(self, expr, dst):
        first = True
        for t in expr.split("+"):
            k, v = t.split("*") if "*" in t else ("1", t)
            src = {"c": sC, "w": sW, "g": sG}[v]
            if first:
                self(f"s_mul_i32 s{dst}, s{src}, {k}"); first = False
            else:
                self(f"s_mul_i32 s{sT0}, s{src}, {k}")
                self(f"s_add_u32 s{dst}, s{dst}, s{sT0}")
        self(f"s_and_b32 s{dst}, s{dst}, 15")

    def tag_hash(self):
        self(f"s_mul_i32 s{sTAG}, s{sTAG}, 0x9E3779B1")
        self(f"s_add_u32 s{sTAG}, s{sTAG}, 0x7F4A7C15")

    def allreduce_rows(self, v, t, op):
        self(f"v_mov_b32 v{t}, v{v}")
        self("s_nop 1")
        self(f"v_permlane16_swap_b32 v{v}, v{t}")
        self(f"{op} v{v}, v{v}, v{t}")
        self(f"v_mov_b32 v{t}, v{v}")
        self("s_nop 1")
        self(f"v_permlane32_swap_b32 v{v}, v{t}")
        self(f"{op} v{v}, v{v}, v{t}")


class P:
    depth = 8; depthv = None; ramp = None; trig = 9; rotk = "2*c"; rotv = "c"
    prio_s = 2; prio_l = 0; nt = "nt"; backoff = 4; stamps = False; dbgwg = None
    force_slow = False; swapmap = False; qalways_b = False; fin_pipe = True
    wo_at = -1; hbpo_at = 0; exp_stop = 0; exp_q = 4; exp_qf = 'sc1'; qld = 'nt'; hald = 'sc1'; hb_st = 'sc1'; hb_ld = 'sc1'; fin_delay = 0; hb_po = 'sc1'


def s_role(a, p):
    NT = " " + p.nt if p.nt else ""
    vKG, vJ, vFL, vONE = 2, 3, 4, 5
    vA0, vT0, vT1, vT2 = 6, 7, 8, 9
    vQP, vQPA = 150, 152
    if p.prio_s:
        a(f"s_setprio {p.prio_s}")
    a(f"""
    v_lshrrev_b32 v{vKG}, 4, v{vL}
    v_and_b32 v{vJ}, 15, v{vL}
    v_mov_b32 v{vFL}, {FL}
    v_mov_b32 v{vONE}, 1
    s_getreg_b32 s{sXCC}, hwreg(HW_REG_XCC_ID)
    s_and_b32 s{sXCC}, s{sXCC}, 7
    s_mov_b32 s{sPUB}, 0
    s_mov_b32 s{sQO}, {WS_QA}
    v_lshlrev_b32 v{vQPA}, 3, v{vL}
    s_cmp_lg_u32 s{sW}, 0
    s_cbranch_scc1 L_s_notq
    """)
    vTR, vX, vBF, vACC = 10, 16, 32, 96
    a(f"""
    v_lshrrev_b32 v{vT0}, 3, v{vL}
    v_and_b32 v{vT1}, 6, v{vT0}
    v_and_b32 v{vT2}, 7, v{vL}
    v_xor_b32 v{vT1}, v{vT1}, v{vT2}
    v_lshlrev_b32 v{vT1}, 4, v{vT1}
    v_lshlrev_b32 v{vT0}, 13, v{vT0}
    v_add_u32 v{vA0}, v{vT0}, v{vT1}
    s_lshr_b32 s{sX0}, s{sC}, 3
    s_and_b32 s{sX1}, s{sC}, 7
    s_mul_i32 s{sT0}, s{sX0}, {112*8192}
    s_lshl_b32 s{sT1}, s{sG}, 10
    s_add_u32 s{sT0}, s{sT0}, s{sT1}
    s_lshl_b32 s{sT1}, s{sX1}, 7
    s_add_u32 s{sT0}, s{sT0}, s{sT1}
    s_mul_i32 s{sT2}, s{sX0}, 224
    v_lshlrev_b32 v{vT2}, 4, v{vL}
    s_mov_b32 s{sT3}, 0
    s_waitcnt lgkmcnt(0)
    """)
    a.srd_off(RA, 10, 11, sT0, 111 * 8192 + 128)
    a.srd(RB, 4, 5, 896)
    a(f"s_mov_b32 m0, {XL}")
    a("s_mov_b64 exec, 0x3fff")
    a(f"buffer_load_dwordx4 v{vT2}, s[{RB}:{RB+3}], s{sT2} offen{NT} lds")
    a("s_mov_b64 exec, -1")
    a(f"s_mov_b32 m0, {WL}")
    a("s_nop 0")
    for ii in range(14):
        a(f"buffer_load_dwordx4 v{vA0}, s[{RA}:{RA+3}], s{sT3} offen{NT} lds")
        if ii < 13:
            a("s_add_u32 m0, m0, 1024")
            a(f"s_add_u32 s{sT3}, s{sT3}, 65536")
    a.stamp(13)
    a("s_barrier")
    a.stamp(1)
    a(f"s_load_dword s{sTAG}, s[18:19], {WS_EP}")
    a.srd(WS, 18, 19, WS_SIZE)
    a(f"s_mov_b32 s{sT3}, {WL}")
    a.tr_addrs(vTR, f"s{sT3}", vT0, vT1, vT2)
    for r in (vX + 14, vX + 15):
        a(f"v_mov_b32 v{r}, 0")
    for t in range(4):
        a(f"v_mov_b32 v{vBF+16*t+14}, 0")
        a(f"v_mov_b32 v{vBF+16*t+15}, 0")
    a(f"""
    s_mov_b32 s{sM1}, 0xffff0000
    s_mov_b32 s{sM1+1}, 0
    s_mov_b32 s{sM2}, 0
    s_mov_b32 s{sM2+1}, 0xffff
    s_mov_b32 s{sM3}, 0
    s_mov_b32 s{sM3+1}, 0xffff0000
    s_lshl_b32 s{sQO}, s{sG}, 14
    s_lshl_b32 s{sT1}, s{sX0}, 12
    s_add_u32 s{sQO}, s{sQO}, s{sT1}
    s_lshl_b32 s{sT1}, s{sX1}, 9
    s_add_u32 s{sQO}, s{sQO}, s{sT1}
    s_add_u32 s{sQO}, s{sQO}, {WS_QA}
    """)
    vXA = 14
    a(f"v_lshlrev_b32 v{vXA}, 3, v{vKG}")
    a(f"v_add_u32 v{vXA}, {XL}, v{vXA}")
    a.spin_lds(vFL, F_PO, 1, vT0)
    a("s_waitcnt vmcnt(0)")
    a.stamp(2)

    def q_reads(t):
        for jj in range(7):
            a(f"ds_read_b64_tr_b16 v[{vBF+16*t+2*jj}:{vBF+16*t+2*jj+1}], v{vTR+t} offset:{2048*jj}")

    def q_mfma(t):
        for J in range(4):
            c = "0" if J == 0 else f"v[{vACC+4*t}:{vACC+4*t+3}]"
            a(f"v_mfma_f32_16x16x32_bf16 v[{vACC+4*t}:{vACC+4*t+3}], v[{vX+4*J}:{vX+4*J+3}], v[{vBF+16*t+4*J}:{vBF+16*t+4*J+3}], {c}")
    for jj in range(7):
        a(f"ds_read_b64 v[{vX+2*jj}:{vX+2*jj+1}], v{vXA} offset:{32*jj}")
    q_reads(0)
    a("s_waitcnt lgkmcnt(7)")
    q_reads(1)
    a("s_waitcnt lgkmcnt(7)"); q_mfma(0)
    q_reads(2)
    a("s_waitcnt lgkmcnt(7)"); q_mfma(1)
    q_reads(3)
    a("s_waitcnt lgkmcnt(7)"); q_mfma(2)
    a("s_waitcnt lgkmcnt(0)"); q_mfma(3)
    a.tag_hash()
    a(f"""
    v_mov_b32 v{vQP+1}, s{sTAG}
    s_mov_b32 s{sPUB}, 1
    v_cndmask_b32 v{vQP}, v{vACC}, v{vACC+4}, s[{sM1}:{sM1+1}]
    v_cndmask_b32 v{vQP}, v{vQP}, v{vACC+8}, s[{sM2}:{sM2+1}]
    s_nop 4
    v_cndmask_b32 v{vQP}, v{vQP}, v{vACC+12}, s[{sM3}:{sM3+1}]
    v_and_b32 v{vQP}, -8, v{vQP}
    v_or_b32 v{vQP}, s{sXCC}, v{vQP}
    buffer_store_dwordx2 v[{vQP}:{vQP+1}], v{vQPA}, s[{WS}:{WS+3}], s{sQO} offen
    """)
    if p.qalways_b:
        a(f"s_add_u32 s{sT0}, s{sQO}, {WS_QB-WS_QA}")
        a(f"buffer_store_dwordx2 v[{vQP}:{vQP+1}], v{vQPA}, s[{WS}:{WS+3}], s{sT0} offen sc1")
        a(f"s_mov_b32 s{sPUB}, 0")
    a.stamp(3)
    a("s_branch L_s_common")

    vPO = 112
    a("L_s_notq:")
    a(f"""
    s_cmp_lg_u32 s{sW}, 1
    s_cbranch_scc1 L_s_other
    v_lshlrev_b32 v{vT0}, 2, v{vL}
    v_add_u32 v{vT0}, {FL}, v{vT0}
    v_mov_b32 v{vT1}, 0
    s_mov_b32 exec_hi, 0
    ds_write_b32 v{vT0}, v{vT1}
    s_mov_b64 exec, -1
    """)
    for r in range(4):
        a(f"v_mov_b32 v{vPO+r}, -1")
    a(f"""
    v_lshrrev_b32 v{vT0}, 3, v{vL}
    v_and_b32 v{vT1}, 7, v{vL}
    v_lshlrev_b32 v{vT1}, 4, v{vT1}
    v_lshlrev_b32 v{vA0}, 12, v{vT0}
    v_add_u32 v{vA0}, v{vA0}, v{vT1}
    v_lshlrev_b32 v{vT0}, 13, v{vT0}
    v_add_u32 v{vT0}, v{vT0}, v{vT1}
    s_lshl_b32 s{sX0}, s{sG}, 17
    s_lshl_b32 s{sT1}, s{sC}, 7
    s_add_u32 s{sX0}, s{sX0}, s{sT1}
    s_add_u32 s{sX0}, s{sX0}, {WS_HA}
    s_and_b32 s{sT2}, s{sC}, 3
    s_lshl_b32 s{sX1}, s{sT2}, 15
    s_lshr_b32 s{sT1}, s{sC}, 2
    s_lshl_b32 s{sT3}, s{sG}, 3
    s_add_u32 s{sT1}, s{sT1}, s{sT3}
    s_lshl_b32 s{sT1}, s{sT1}, 7
    s_add_u32 s{sX1}, s{sX1}, s{sT1}
    s_add_u32 s{sX1}, s{sX1}, {WS_HB}
    s_waitcnt lgkmcnt(0)
    """)
    a.srd(WS, 18, 19, WS_SIZE)
    a(f"s_load_dword s{sTAG}, s[18:19], {WS_EP}")
    for i in range(4):
        a(f"buffer_store_dwordx4 v[{vPO}:{vPO+3}], v{vA0}, s[{WS}:{WS+3}], s{sX0} offen")
        if i < 3:
            a(f"s_add_u32 s{sX0}, s{sX0}, 32768")
    def hb_poison():
        a(f"""
        s_cmp_eq_u32 s{sT2}, 3
        s_cselect_b32 exec_lo, 0xffff, -1
        s_mov_b32 exec_hi, 0
        buffer_store_dwordx4 v[{vPO}:{vPO+3}], v{vT0}, s[{WS}:{WS+3}], s{sX1} offen {p.hb_po}
        s_mov_b64 exec, -1
        """)
    if p.hbpo_at == 2:
        a(f"s_add_u32 s{sM1}, s18, s{sX1}")
        a(f"s_addc_u32 s{sM1+1}, s19, 0")
        for i in range(4):
            if i >= 2:
                a(f"s_cmp_eq_u32 s{sT2}, 3")
                a(f"s_cselect_b32 s{sVAL}, 0, {8192*i}")
                a(f"s_load_dword s{88+i}, s[{sM1}:{sM1+1}], s{sVAL}")
            else:
                a(f"s_load_dword s{88+i}, s[{sM1}:{sM1+1}], {8192*i}")
    if p.hbpo_at == 0:
        hb_poison()
    a("s_barrier")
    if p.hbpo_at == 0:
        a("s_waitcnt vmcnt(1) lgkmcnt(0)")
        a.signal(vFL, F_PO, vONE)
    else:
        a("s_waitcnt vmcnt(0) lgkmcnt(0)")
        a.signal(vFL, F_PO, vONE)
        hb_poison()
    a.tag_hash()
    a(f"""
    s_mov_b64 exec, 1
    v_mov_b32 v8, 0
    v_mov_b32 v9, s{sTAG}
    v_mov_b32 v{vA0}, 0
    s_lshl_b32 s{sT0}, s{sG}, 8
    s_lshl_b32 s{sT1}, s{sC}, 3
    s_add_u32 s{sT0}, s{sT0}, s{sT1}
    s_add_u32 s{sT0}, s{sT0}, {WS_RD}
    s_waitcnt vmcnt(0)
    buffer_store_dwordx2 v[8:9], v{vA0}, s[{WS}:{WS+3}], s{sT0} offen sc1
    s_mov_b64 exec, -1
    """)
    a.stamp(3)
    a("s_branch L_s_common")
    a("L_s_other:")
    a("s_waitcnt lgkmcnt(0)")
    a(f"s_load_dword s{sTAG}, s[18:19], {WS_EP}")
    a.srd(WS, 18, 19, WS_SIZE)
    a("s_barrier")
    a("s_waitcnt lgkmcnt(0)")
    a.tag_hash()

    a("L_s_common:")
    if p.exp_stop == 1:
        a("s_branch L_exp_exit")
    vG, vGA, vEA = 16, 10, 148
    vRD = 146
    a.rot(p.rotk, sROTK)
    a(f"s_and_b32 s{sROTK}, s{sROTK}, 14")
    a(f"""
    v_lshlrev_b32 v{vGA}, 4, v{vL}
    s_lshl_b32 s{sX0}, s{sG}, 14
    s_lshl_b32 s{sT0}, s{sW}, 10
    s_add_u32 s{sX0}, s{sX0}, s{sT0}
    s_add_u32 s{sX0}, s{sX0}, {WS_QA}
    """)
    a(f"""
    s_lshr_b32 s{sT0}, s{sB}, 3
    v_and_b32 v{vT0}, 7, v{vL}
    v_lshlrev_b32 v{vT0}, 2, v{vT0}
    v_add_u32 v{vT0}, s{sT0}, v{vT0}
    v_lshlrev_b32 v{vT0}, 3, v{vT0}
    v_lshrrev_b32 v{vT1}, 3, v{vL}
    v_lshlrev_b32 v{vT1}, 8, v{vT1}
    v_add_u32 v{vT0}, v{vT0}, v{vT1}
    v_add_u32 v{vEA}, {WS_RD}, v{vT0}
    s_cmp_lt_u32 s{sB}, 28
    s_cselect_b32 s{sT0}, 1, 0
    s_cmp_eq_u32 s{sW}, 3
    s_cselect_b32 s{sFIN}, s{sT0}, 0
    """)
    vQ, vK, vKA, vD, vS, vP, vQF = 16, 48, 112, 120, 128, 136, 144
    a(f"""
    v_and_b32 v{vT0}, 1, v{vJ}
    v_lshlrev_b32 v{vT0}, 9, v{vT0}
    v_lshlrev_b32 v{vT1}, 4, v{vKG}
    v_add_u32 v{vT0}, v{vT0}, v{vT1}
    v_add_u32 v{vQF}, {QL}, v{vT0}
    v_xor_b32 v{vT0}, v{vKG}, v{vJ}
    v_lshlrev_b32 v{vT0}, 4, v{vT0}
    v_lshlrev_b32 v{vT1}, 9, v{vJ}
    s_lshl_b32 s{sT0}, s{sW}, 14
    v_add_u32 v{vT1}, s{sT0}, v{vT1}
    """)
    for J in range(8):
        a(f"v_xor_b32 v{vT2}, {J<<6}, v{vT0}")
        a(f"v_add_u32 v{vKA+J}, v{vT1}, v{vT2}")
    if p.trig:
        a.spin_lds(vFL, F_H, 4, vT0)
    a.stamp(4)
    LQ, LQD, LQU, LQN = a.lab("qg"), a.lab("qgd"), a.lab("qgu"), a.lab("qgn")

    def publish_b():
        lab = a.lab("pub")
        a(f"s_cmp_eq_u32 s{sPUB}, 0")
        a(f"s_cbranch_scc1 {lab}")
        a(f"s_add_u32 s{sT0}, s{sQO}, {WS_QB-WS_QA}")
        a(f"buffer_store_dwordx2 v[{vQP}:{vQP+1}], v{vQPA}, s[{WS}:{WS+3}], s{sT0} offen sc1")
        a(f"s_mov_b32 s{sPUB}, 0")
        a(f"{lab}:")
    a(f"s_mov_b32 s{sCNT}, 0")
    a(f"s_mov_b32 s{sX1}, s{sX0}")
    a(f"{LQ}:")
    a(f"s_add_u32 s{sX2}, s{sX1}, 4096")
    a(f"s_add_u32 s{sX3}, s{sX1}, 8192")
    a(f"s_add_u32 s{sT3}, s{sX1}, 12288")
    for r, sr in enumerate((sX1, sX2, sX3, sT3)[:p.exp_q]):
        a(f"buffer_load_dwordx4 v[{vG+4*r}:{vG+4*r+3}], v{vGA}, s[{WS}:{WS+3}], s{sr} offen {p.qld}")
    if p.exp_q < 4:
        a("s_waitcnt vmcnt(0)")
        a(f"s_branch {LQD}")
    a(f"""
    s_waitcnt vmcnt(0)
    v_max3_u32 v{vT0}, v{vG+1}, v{vG+3}, v{vG+5}
    v_min3_u32 v{vT1}, v{vG+1}, v{vG+3}, v{vG+5}
    v_max3_u32 v{vT0}, v{vT0}, v{vG+7}, v{vG+9}
    v_min3_u32 v{vT1}, v{vT1}, v{vG+7}, v{vG+9}
    v_max3_u32 v{vT0}, v{vT0}, v{vG+11}, v{vG+13}
    v_min3_u32 v{vT1}, v{vT1}, v{vG+11}, v{vG+13}
    v_max_u32 v{vT0}, v{vT0}, v{vG+15}
    v_min_u32 v{vT1}, v{vT1}, v{vG+15}
    v_xor_b32 v{vT0}, s{sTAG}, v{vT0}
    v_xor_b32 v{vT1}, s{sTAG}, v{vT1}
    v_or_b32 v{vT0}, v{vT0}, v{vT1}
    v_cmp_ne_u32 vcc, 0, v{vT0}
    s_cbranch_vccz {LQD}
    s_add_u32 s{sCNT}, s{sCNT}, 1
    s_cmp_lt_u32 s{sCNT}, 3
    s_cbranch_scc1 {LQN}
    """)
    a.setflag(vFL, F_NB, vONE)
    publish_b()
    a(f"""
    s_and_b32 s{sT0}, s{sCNT}, 1
    s_mul_i32 s{sT0}, s{sT0}, {WS_QB-WS_QA}
    s_add_u32 s{sX1}, s{sX0}, s{sT0}
    {LQN}:
    s_cmp_lt_u32 s{sCNT}, {SPIN_MEM}
    s_sleep {p.backoff}
    s_cbranch_scc1 {LQ}
    {LQD}:
    """)
    if p.stamps:
        a("s_waitcnt lgkmcnt(0)")
        a(f"s_mul_i32 s90, s{sCNT}, 100")
        a("s_add_u32 s90, s90, s64")
        a("s_addc_u32 s91, s65, 0")
    a(f"""
    v_or3_b32 v{vT0}, v{vG}, v{vG+2}, v{vG+4}
    v_bitop3_b32 v{vT1}, v{vG}, v{vG+2}, v{vG+4} bitop3:0x80
    v_or3_b32 v{vT0}, v{vT0}, v{vG+6}, v{vG+8}
    v_bitop3_b32 v{vT1}, v{vT1}, v{vG+6}, v{vG+8} bitop3:0x80
    v_or3_b32 v{vT0}, v{vT0}, v{vG+10}, v{vG+12}
    v_bitop3_b32 v{vT1}, v{vT1}, v{vG+10}, v{vG+12} bitop3:0x80
    v_or_b32 v{vT0}, v{vT0}, v{vG+14}
    v_and_b32 v{vT1}, v{vT1}, v{vG+14}
    v_xor_b32 v{vT0}, s{sXCC}, v{vT0}
    v_xor_b32 v{vT1}, s{sXCC}, v{vT1}
    v_or_b32 v{vT0}, v{vT0}, v{vT1}
    v_and_b32 v{vT0}, 7, v{vT0}
    v_cmp_ne_u32 vcc, 0, v{vT0}
    v_add_f32 v{vG}, v{vG}, v{vG+4}
    v_add_f32 v{vG+2}, v{vG+2}, v{vG+6}
    v_add_f32 v{vG+8}, v{vG+8}, v{vG+12}
    v_add_f32 v{vG+10}, v{vG+10}, v{vG+14}
    v_add_f32 v{vG}, v{vG}, v{vG+8}
    v_add_f32 v{vG+2}, v{vG+2}, v{vG+10}
    v_cvt_pk_bf16_f32 v{vT0}, v{vG}, v{vG+2}
    v_lshlrev_b32 v{vT1}, 2, v{vL}
    s_lshl_b32 s{sT0}, s{sW}, 8
    s_add_u32 s{sT0}, s{sT0}, {QL}
    v_add_u32 v{vT1}, s{sT0}, v{vT1}
    ds_write_b32 v{vT1}, v{vT0}
    s_cbranch_vccz {LQU}
    """)
    a.setflag(vFL, F_M, vONE)
    a(f"{LQU}:")
    if p.force_slow:
        a.setflag(vFL, F_M, vONE)
    a.signal(vFL, F_Q, vONE)
    LNR = a.lab("nord")
    a(f"s_cmp_eq_u32 s{sFIN}, 0")
    a(f"s_cbranch_scc1 {LNR}")
    a(f"buffer_load_dwordx2 v[{vRD}:{vRD+1}], v{vEA}, s[{WS}:{WS+3}], 0 offen sc1")
    a(f"{LNR}:")
    a.stamp(5)
    if p.exp_stop == 2:
        a("s_branch L_exp_exit")

    a(f"s_lshl_b32 s{sT0}, s{sW}, 2")
    a(f"v_add_u32 v{vT0}, s{sT0}, v{vFL}")
    a.spin_lds(vT0, F_K, 1, vT2)
    for tt in range(2):
        for J in range(8):
            if tt == 1 and J == 7:
                a("s_waitcnt lgkmcnt(8)")
            a(f"ds_read_b128 v[{vK+32*tt+4*J}:{vK+32*tt+4*J+3}], v{vKA+J} offset:{KL+8192*tt}")
    LW, LWD = a.lab("qw"), a.lab("qwd")
    a(f"s_mov_b32 s{sCNT}, 0")
    a(f"{LW}:")
    a(f"ds_read_b32 v{vT1}, v{vFL} offset:{F_Q}")
    a(f"ds_read_b32 v{vT2}, v{vFL} offset:{F_NB}")
    a("s_waitcnt lgkmcnt(0)")
    a(f"v_readfirstlane_b32 s{sVAL}, v{vT1}")
    a(f"v_readfirstlane_b32 s{sVAL2}, v{vT2}")
    a(f"s_cmp_ge_u32 s{sVAL}, 4")
    a(f"s_cbranch_scc1 {LWD}")
    LW2 = a.lab("qw2")
    a(f"s_cmp_eq_u32 s{sVAL2}, 0")
    a(f"s_cbranch_scc1 {LW2}")
    publish_b()
    a(f"{LW2}:")
    a(f"s_add_u32 s{sCNT}, s{sCNT}, 1")
    a(f"s_cmp_lt_u32 s{sCNT}, {SPIN_LDS}")
    a("s_sleep 1")
    a(f"s_cbranch_scc1 {LW}")
    a(f"{LWD}:")
    a(f"ds_read_b32 v149, v{vFL} offset:{F_M}")
    for J in range(8):
        a(f"ds_read_b128 v[{vQ+4*J}:{vQ+4*J+3}], v{vQF} offset:{64*J}")
    a.stamp(6)
    for J in range(8):
        a(f"s_waitcnt lgkmcnt({7-J})")
        for tt in range(2):
            c = "0" if J == 0 else f"v[{vD+4*tt}:{vD+4*tt+3}]"
            a(f"v_mfma_f32_16x16x32_bf16 v[{vD+4*tt}:{vD+4*tt+3}], v[{vK+32*tt+4*J}:{vK+32*tt+4*J+3}], v[{vQ+4*J}:{vQ+4*J+3}], {c}")
    vPA0, vPA1, vSMA, vSMW = 10, 11, 14, 15
    vMX, vSUM = 12, 13
    a(f"""
    v_readfirstlane_b32 s{sMODE}, v149
    v_lshlrev_b32 v{vT0}, 1, v{vKG}
    v_add_u32 v{vT0}, s{sROTK}, v{vT0}
    v_add_u32 v{vT1}, 8, v{vT0}
    v_and_b32 v{vT0}, 15, v{vT0}
    v_and_b32 v{vT1}, 15, v{vT1}
    v_lshlrev_b32 v{vT0}, 2, v{vT0}
    v_lshlrev_b32 v{vT1}, 2, v{vT1}
    v_and_b32 v{vT2}, 1, v{vJ}
    v_lshlrev_b32 v{vSMA}, 4, v{vT2}
    v_add_u32 v{vSMA}, {SM}, v{vSMA}
    s_lshl_b32 s{sT0}, s{sW}, 2
    v_add_u32 v{vSMW}, s{sT0}, v{vSMA}
    v_lshlrev_b32 v{vT2}, 8, v{vT2}
    s_lshl_b32 s{sT0}, s{sW}, 6
    s_add_u32 s{sT0}, s{sT0}, {PL}
    v_add_u32 v{vT2}, s{sT0}, v{vT2}
    v_add_u32 v{vPA0}, v{vT2}, v{vT0}
    v_add_u32 v{vPA1}, v{vT2}, v{vT1}
    s_mov_b32 s{sT1}, 0xffff0000
    s_mov_b32 s{sT2}, {SCALE_LOG2E:#x}
    """)
    for e in range(4):
        a(f"v_cvt_pk_bf16_f32 v{vP+e}, v{vD+2*e}, v{vD+2*e+1}")
    for e in range(4):
        a(f"v_lshlrev_b32 v{vS+2*e}, 16, v{vP+e}")
        a(f"v_and_b32 v{vS+2*e+1}, s{sT1}, v{vP+e}")
    a(f"""
    v_max3_f32 v{vMX}, v{vS}, v{vS+1}, v{vS+2}
    v_max3_f32 v{vT1}, v{vS+3}, v{vS+4}, v{vS+5}
    v_max3_f32 v{vMX}, v{vMX}, v{vS+6}, v{vS+7}
    v_max_f32 v{vMX}, v{vMX}, v{vT1}
    """)
    a.allreduce_rows(vMX, vT0, "v_max_f32")
    a("s_mov_b64 exec, 3")
    a(f"ds_write_b32 v{vSMW}, v{vMX}")
    a("s_mov_b64 exec, 1")
    a(f"ds_add_u32 v{vFL}, v{vONE} offset:{F_X}")
    a.exec_all()
    a.spin_lds(vFL, F_X, 4, vT0, sleep=0)
    a(f"ds_read_b128 v[16:19], v{vSMA}")
    a("s_waitcnt lgkmcnt(0)")
    a("v_max3_f32 v16, v16, v17, v18")
    a("v_max_f32 v16, v16, v19")
    a(f"v_mul_f32 v{vMX}, s{sT2}, v16")
    for e in range(8):
        a(f"v_fma_f32 v{vP+e}, v{vS+e}, s{sT2}, -v{vMX}")
    for e in range(8):
        a(f"v_exp_f32 v{vP+e}, v{vP+e}")
    a(f"""
    s_nop 0
    v_cvt_pk_bf16_f32 v16, v{vP}, v{vP+1}
    v_cvt_pk_bf16_f32 v17, v{vP+2}, v{vP+3}
    v_cvt_pk_bf16_f32 v18, v{vP+4}, v{vP+5}
    v_cvt_pk_bf16_f32 v19, v{vP+6}, v{vP+7}
    v_add_f32 v{vT0}, v{vP}, v{vP+1}
    v_add_f32 v{vT1}, v{vP+2}, v{vP+3}
    v_add_f32 v{vT2}, v{vP+4}, v{vP+5}
    v_add_f32 v{vSUM}, v{vP+6}, v{vP+7}
    """)
    a.exec_pat(0x00030003)
    a(f"ds_write_b64 v{vPA0}, v[16:17]")
    a(f"ds_write_b64 v{vPA1}, v[18:19]")
    a.exec_all()
    a(f"""
    v_add_f32 v{vT0}, v{vT0}, v{vT1}
    v_add_f32 v{vSUM}, v{vSUM}, v{vT2}
    v_add_f32 v{vSUM}, v{vSUM}, v{vT0}
    """)
    a.allreduce_rows(vSUM, vT0, "v_add_f32")
    a("s_mov_b64 exec, 3")
    a(f"ds_write_b32 v{vSMW}, v{vSUM} offset:{SS-SM}")
    a("s_mov_b64 exec, 1")
    a(f"ds_add_u32 v{vFL}, v{vONE} offset:{F_P}")
    a.exec_all()
    a.stamp(7)
    if p.exp_stop == 3:
        a("s_branch L_exp_exit")

    LNS, LR, LRD = a.lab("nordc"), a.lab("rd"), a.lab("rdd")
    a(f"s_cmp_eq_u32 s{sFIN}, 0")
    a(f"s_cbranch_scc1 {LNS}")
    a(f"s_mov_b32 s{sCNT}, 0")
    a(f"{LR}:")
    a(f"""
    s_waitcnt vmcnt(0)
    v_cmp_ne_u32 vcc, s{sTAG}, v{vRD+1}
    s_cbranch_vccz {LNS}
    s_add_u32 s{sCNT}, s{sCNT}, 1
    s_cmp_lt_u32 s{sCNT}, {SPIN_MEM}
    s_cbranch_scc0 {LNS}
    s_sleep {p.backoff}
    buffer_load_dwordx2 v[{vRD}:{vRD+1}], v{vEA}, s[{WS}:{WS+3}], 0 offen sc1
    s_branch {LR}
    {LNS}:
    """)
    LSL, LS2, LR2, LR2D = a.lab("slowend"), a.lab("slow2"), a.lab("r2"), a.lab("r2d")
    a(f"""
    s_cmp_eq_u32 s{sMODE}, 0
    s_cbranch_scc1 {LSL}
    s_cmp_lg_u32 s{sW}, 1
    s_cbranch_scc1 {LS2}
    v_mov_b32 v16, -1
    v_mov_b32 v17, -1
    v_mov_b32 v18, -1
    v_mov_b32 v19, -1
    v_lshrrev_b32 v{vT0}, 3, v{vL}
    v_and_b32 v{vT1}, 7, v{vL}
    v_lshlrev_b32 v{vT1}, 4, v{vT1}
    v_lshlrev_b32 v{vT0}, 12, v{vT0}
    v_add_u32 v{vT0}, v{vT0}, v{vT1}
    s_lshl_b32 s{sT0}, s{sG}, 17
    s_lshl_b32 s{sT1}, s{sC}, 7
    s_add_u32 s{sT0}, s{sT0}, s{sT1}
    s_add_u32 s{sT0}, s{sT0}, {WS_HA2}
    """)
    for i in range(4):
        a(f"buffer_store_dwordx4 v[16:19], v{vT0}, s[{WS}:{WS+3}], s{sT0} offen sc1")
        if i < 3:
            a(f"s_add_u32 s{sT0}, s{sT0}, 32768")
    a("s_waitcnt vmcnt(0)")
    a.signal(vFL, F_B, vONE)
    a(f"""
    s_mov_b64 exec, 1
    v_mov_b32 v16, 0
    v_mov_b32 v17, s{sTAG}
    v_mov_b32 v{vT0}, 0
    s_lshl_b32 s{sT0}, s{sG}, 8
    s_lshl_b32 s{sT1}, s{sC}, 3
    s_add_u32 s{sT0}, s{sT0}, s{sT1}
    s_add_u32 s{sT0}, s{sT0}, {WS_R2}
    buffer_store_dwordx2 v[16:17], v{vT0}, s[{WS}:{WS+3}], s{sT0} offen sc1
    s_mov_b64 exec, -1
    s_branch {LSL}
    {LS2}:
    s_cmp_lg_u32 s{sW}, 2
    s_cbranch_scc1 {LSL}
    v_and_b32 v{vT0}, 31, v{vL}
    v_lshlrev_b32 v{vT0}, 3, v{vT0}
    s_lshl_b32 s{sT0}, s{sG}, 8
    s_add_u32 s{sT0}, s{sT0}, {WS_R2}
    s_mov_b32 s{sCNT}, 0
    {LR2}:
    buffer_load_dwordx2 v[16:17], v{vT0}, s[{WS}:{WS+3}], s{sT0} offen sc1
    s_waitcnt vmcnt(0)
    v_cmp_ne_u32 vcc, s{sTAG}, v17
    s_cbranch_vccz {LR2D}
    s_add_u32 s{sCNT}, s{sCNT}, 1
    s_cmp_lt_u32 s{sCNT}, {SPIN_MEM}
    s_sleep {p.backoff}
    s_cbranch_scc1 {LR2}
    {LR2D}:
    """)
    a.signal(vFL, F_E, vONE)
    a(f"{LSL}:")

    vSA, vO0, vO1, vWA0, vWA1, vHA, vOS, vOB, vHB = 10, 11, 14, 15, 16, 17, 18, 19, 20
    vST, vFA, vFB = 22, 26, 27
    a(f"""
    v_lshlrev_b32 v{vT0}, 1, v{vKG}
    v_xor_b32 v{vT0}, v{vT0}, v{vJ}
    v_lshlrev_b32 v{vT0}, 4, v{vT0}
    v_mul_u32_u24 v{vT1}, 896, v{vKG}
    v_add_u32 v{vO0}, v{vT0}, v{vT1}
    v_xor_b32 v{vT0}, 128, v{vT0}
    v_add_u32 v{vO1}, v{vT0}, v{vT1}
    s_lshl_b32 s{sT0}, s{sG}, 9
    s_lshr_b32 s{sT1}, s{sC}, 2
    s_lshl_b32 s{sT1}, s{sT1}, 6
    s_add_u32 s{sT0}, s{sT0}, s{sT1}
    s_mul_i32 s{sT0}, s{sT0}, 896
    s_and_b32 s{sT1}, s{sC}, 3
    s_lshl_b32 s{sT1}, s{sT1}, 8
    s_add_u32 s{sT0}, s{sT0}, s{sT1}
    s_add_u32 s{RC}, s12, s{sT0}
    s_addc_u32 s{RC+1}, s13, 0
    s_and_b32 s{RC+1}, s{RC+1}, 0xffff
    s_sub_u32 s{RC+2}, 3670016, s{sT0}
    s_mov_b32 s{RC+3}, 0x20000
    """)
    a.spin_lds(vFL, F_V, 4, vT2)
    a.stamp(8)
    a(f"s_lshl_b32 s{sT0}, s{sW}, 12")
    a(f"s_add_u32 s{sT0}, s{sT0}, {WL}")
    a(f"s_mov_b32 m0, s{sT0}")
    a(f"s_mul_i32 s{sT1}, s{sW}, {16*896}")
    for u in range(4):
        a(f"buffer_load_dwordx4 v{vO1 if u & 1 else vO0}, s[{RC}:{RC+3}], s{sT1} offen{NT} lds")
        if u < 3:
            a("s_add_u32 m0, m0, 1024")
            a(f"s_add_u32 s{sT1}, s{sT1}, {4*896}")
    a(f"""
    v_lshrrev_b32 v{vT0}, 2, v{vL}
    v_lshlrev_b32 v{vT1}, 8, v{vT0}
    v_and_b32 v{vT0}, 7, v{vT0}
    v_lshlrev_b32 v{vT0}, 1, v{vT0}
    v_bfe_u32 v{vT2}, v{vL}, 1, 1
    v_xor_b32 v{vT0}, v{vT0}, v{vT2}
    v_and_b32 v{vT2}, 1, v{vL}
    v_lshlrev_b32 v{vT2}, 3, v{vT2}
    v_add_u32 v{vT1}, v{vT1}, v{vT2}
    v_add_u32 v{vT1}, {WL}, v{vT1}
    s_lshl_b32 s{sT0}, s{sW}, 2
    v_xor_b32 v{vT2}, s{sT0}, v{vT0}
    v_lshlrev_b32 v{vT2}, 4, v{vT2}
    v_add_u32 v{vWA0}, v{vT1}, v{vT2}
    s_add_u32 s{sT0}, s{sT0}, 2
    v_xor_b32 v{vT2}, s{sT0}, v{vT0}
    v_lshlrev_b32 v{vT2}, 4, v{vT2}
    v_add_u32 v{vWA1}, v{vT1}, v{vT2}
    v_lshrrev_b32 v{vT0}, 2, v{vL}
    v_lshlrev_b32 v{vT0}, 7, v{vT0}
    v_add_u32 v{vSA}, 64, v{vT0}
    v_and_b32 v{vT1}, 3, v{vL}
    v_lshlrev_b32 v{vT1}, 4, v{vT1}
    v_add_u32 v{vHA}, v{vT0}, v{vT1}
    v_and_b32 v{vT0}, 3, v{vL}
    v_lshlrev_b32 v{vT0}, 2, v{vT0}
    v_add_u32 v{vT0}, v{vT0}, v{vKG}
    v_lshlrev_b32 v{vT0}, 1, v{vT0}
    v_mov_b32 v21, v{vT0}
    s_lshl_b32 s{sT0}, s{sW}, 5
    s_add_u32 s{sT0}, s{sT0}, {OL}
    v_add_u32 v{vOS}, s{sT0}, v{vT0}
    v_lshlrev_b32 v{vT0}, 3, v{vKG}
    v_add_u32 v{vOB}, {OL}, v{vT0}
    v_and_b32 v{vT0}, 1, v{vJ}
    v_lshlrev_b32 v{vT0}, 6, v{vT0}
    v_lshlrev_b32 v{vT1}, 4, v{vKG}
    v_add_u32 v{vHB}, v{vT0}, v{vT1}
    s_lshl_b32 s{sX1}, s{sG}, 17
    s_lshr_b32 s{sT0}, s{sC}, 2
    s_lshl_b32 s{sT0}, s{sT0}, 2
    s_add_u32 s{sT0}, s{sT0}, s{sW}
    s_lshl_b32 s{sT0}, s{sT0}, 12
    s_add_u32 s{sX1}, s{sX1}, s{sT0}
    s_mul_i32 s{sT0}, s{sMODE}, {WS_HA2-WS_HA}
    s_add_u32 s{sX1}, s{sX1}, s{sT0}
    s_add_u32 s{sX1}, s{sX1}, {WS_HA}
    s_and_b32 s{sT0}, s{sC}, 3
    s_lshl_b32 s{sT0}, s{sT0}, 2
    s_add_u32 s{sX3}, s{sT0}, s{sW}
    s_lshl_b32 s{sX2}, s{sX3}, 13
    s_lshr_b32 s{sT0}, s{sC}, 2
    s_lshl_b32 s{sT1}, s{sG}, 3
    s_add_u32 s{sT0}, s{sT0}, s{sT1}
    s_lshl_b32 s{sT0}, s{sT0}, 7
    s_add_u32 s{sX2}, s{sX2}, s{sT0}
    s_add_u32 s{sX2}, s{sX2}, {WS_HB}
    s_mov_b32 s{sM1}, 0x00020002
    s_mov_b32 s{sM1+1}, 0x00020002
    s_lshr_b32 s{sX0}, s{sB}, 1
    s_lshl_b32 s{sX0}, s{sX0}, 13
    s_and_b32 s{sT0}, s{sB}, 1
    s_lshl_b32 s{sT0}, s{sT0}, 6
    s_add_u32 s{sX0}, s{sX0}, s{sT0}
    s_add_u32 s{sX0}, s{sX0}, {WS_HB}
    s_add_u32 s{sQO}, s{sX0}, 4096
    s_lshl_b32 s{sVAL2}, s{sB}, 5
    """)
    a.srd(RO, 14, 15, 896)
    LFE = a.lab("fe")
    a(f"s_cmp_eq_u32 s{sMODE}, 0")
    a(f"s_cbranch_scc1 {LFE}")
    a.spin_lds(vFL, F_E, 1, vT2)
    a(f"{LFE}:")
    a.spin_lds(vFL, F_D, 4, vT2, sleep=0)
    a.stamp(9)

    vH, vWF, vOF, vOD = 28, 36, 52, 60

    def ha_loads():
        a(f"buffer_load_dwordx2 v[{vST}:{vST+1}], v{vSA}, s[{WS}:{WS+3}], s{sX1} offen {p.hald}")
        a(f"buffer_load_dwordx2 v[{vST+2}:{vST+3}], v{vSA}, s[{WS}:{WS+3}], s{sX1} offen offset:2048 {p.hald}")
        a(f"buffer_load_dwordx4 v[{vH}:{vH+3}], v{vHA}, s[{WS}:{WS+3}], s{sX1} offen {p.hald}")
        a(f"buffer_load_dwordx4 v[{vH+4}:{vH+7}], v{vHA}, s[{WS}:{WS+3}], s{sX1} offen offset:2048 {p.hald}")
    ha_loads()
    a("s_waitcnt vmcnt(4)")
    a.stamp(14)
    a("s_barrier")
    a.stamp(15)
    for t, va in ((0, vWA0), (1, vWA1)):
        for J in range(2):
            for hf in range(2):
                r = vWF + 8 * t + 4 * J + 2 * hf
                a(f"ds_read_b64_tr_b16 v[{r}:{r+1}], v{va} offset:{8192*J+4096*hf}")
    LH, LHD = a.lab("ha"), a.lab("had")
    a(f"s_mov_b32 s{sCNT}, 0")
    a(f"{LH}:")
    a(f"""
    s_waitcnt vmcnt(0)
    v_max3_u32 v{vT0}, v{vH}, v{vH+1}, v{vH+2}
    v_max3_u32 v{vT1}, v{vH+3}, v{vH+4}, v{vH+5}
    v_max3_u32 v{vT2}, v{vH+6}, v{vH+7}, v{vST}
    v_max3_u32 v{vT0}, v{vT0}, v{vST+1}, v{vST+2}
    v_max3_u32 v{vT1}, v{vT1}, v{vT2}, v{vST+3}
    v_max_u32 v{vT0}, v{vT0}, v{vT1}
    v_cmp_eq_u32 vcc, -1, v{vT0}
    v_max_f32 v{vT0}, v{vST}, v{vST+2}
    s_cbranch_vccz {LHD}
    s_add_u32 s{sCNT}, s{sCNT}, 1
    s_cmp_lt_u32 s{sCNT}, {SPIN_MEM}
    s_cbranch_scc0 {LHD}
    """)
    ha_loads()
    a(f"s_branch {LH}")
    a(f"{LHD}:")
    a.stamp(10)
    a(f"""
    s_nop 0
    v_max_f32_dpp v{vT0}, v{vT0}, v{vT0} row_ror:4 {DPP}
    s_nop 1
    v_max_f32_dpp v{vT0}, v{vT0}, v{vT0} row_ror:8 {DPP}
    """)
    a.allreduce_rows(vT0, vT1, "v_max_f32")
    a(f"""
    v_sub_f32 v{vFA}, v{vST}, v{vT0}
    v_sub_f32 v{vFB}, v{vST+2}, v{vT0}
    v_exp_f32 v{vFA}, v{vFA}
    v_exp_f32 v{vFB}, v{vFB}
    s_nop 0
    v_mul_f32 v{vT0}, v{vFA}, v{vST+1}
    v_fmac_f32 v{vT0}, v{vFB}, v{vST+3}
    """)
    for r in range(4):
        a(f"v_mul_f32 v{vH+r}, v{vFA}, v{vH+r}")
    a(f"v_add_f32_dpp v{vT0}, v{vT0}, v{vT0} row_ror:4 {DPP}")
    for r in range(4):
        a(f"v_fmac_f32 v{vH+r}, v{vFB}, v{vH+4+r}")
    a(f"""
    v_add_f32_dpp v{vT0}, v{vT0}, v{vT0} row_ror:8 {DPP}
    v_permlane16_swap_b32 v{vH}, v{vH+1}
    v_mov_b32 v{vT1}, v{vT0}
    v_permlane16_swap_b32 v{vH+2}, v{vH+3}
    v_add_f32 v{vH}, v{vH}, v{vH+1}
    v_permlane16_swap_b32 v{vT0}, v{vT1}
    v_add_f32 v{vH+2}, v{vH+2}, v{vH+3}
    v_add_f32 v{vT0}, v{vT0}, v{vT1}
    v_mov_b32 v{vT1}, v{vT0}
    v_permlane32_swap_b32 v{vH}, v{vH+2}
    v_add_f32 v{vH}, v{vH}, v{vH+2}
    v_permlane32_swap_b32 v{vT0}, v{vT1}
    v_add_f32 v{vT0}, v{vT0}, v{vT1}
    v_add_f32_dpp v{vH}, v{vH}, v{vH} row_ror:4 {DPP}
    v_rcp_f32 v{vT0}, v{vT0}
    s_nop 0
    v_add_f32_dpp v{vH}, v{vH}, v{vH} row_ror:8 {DPP}
    s_nop 0
    v_mul_f32 v{vH}, v{vH}, v{vT0}
    v_cvt_pk_bf16_f32 v{vH}, v{vH}, v{vH}
    """)
    a.exec_pat(0x000F000F)
    a(f"ds_write_b16 v{vOS}, v{vH}")
    a.exec_all()
    a(f"""
    s_waitcnt lgkmcnt(0)
    s_barrier
    ds_read2_b64 v[{vOF}:{vOF+3}], v{vOB} offset0:0 offset1:4
    ds_read2_b64 v[{vOF+4}:{vOF+7}], v{vOB} offset0:8 offset1:12
    """)
    for J in range(2):
        a(f"s_waitcnt lgkmcnt({1-J})")
        for t in range(2):
            c = "0" if J == 0 else f"v[{vOD+4*t}:{vOD+4*t+3}]"
            a(f"v_mfma_f32_16x16x32_bf16 v[{vOD+4*t}:{vOD+4*t+3}], v[{vWF+8*t+4*J}:{vWF+8*t+4*J+3}], v[{vOF+4*J}:{vOF+4*J+3}], {c}")
    LNB = a.lab("nohb")
    a(f"""
    s_cmp_ge_u32 s{sX3}, 14
    s_cbranch_scc1 {LNB}
    s_nop 5
    """)
    for r in range(4):
        a(f"v_cndmask_b32 v{vOD+r}, v{vOD+r}, v{vOD+4+r}, s[{sM1}:{sM1+1}]")
    a.exec_pat(0x00030003)
    a(f"buffer_store_dwordx4 v[{vOD}:{vOD+3}], v{vHB}, s[{WS}:{WS+3}], s{sX2} offen {p.hb_st}")
    a.exec_all()
    a(f"{LNB}:")
    a.stamp(11)

    a(f"s_cmp_eq_u32 s{sFIN}, 0")
    a("s_cbranch_scc1 L_fin")
    if p.fin_delay:
        a(f"s_sleep {p.fin_delay}")
    sets = (28, 68) if p.fin_pipe else (28,)

    def fb_loads(vF):
        for i in range(4):
            so = sX0 if i < 2 else sQO
            a(f"buffer_load_dwordx4 v[{vF+4*i}:{vF+4*i+3}], v{vHA}, s[{WS}:{WS+3}], s{so} offen offset:{2048*(i & 1)} {p.hb_ld}")

    def fb_check(vF, ok):
        a(f"""
        v_max3_u32 v{vT0}, v{vF}, v{vF+1}, v{vF+2}
        v_max3_u32 v{vT1}, v{vF+3}, v{vF+4}, v{vF+5}
        v_max3_u32 v{vT2}, v{vF+6}, v{vF+7}, v{vF+8}
        v_max3_u32 v{vT0}, v{vT0}, v{vF+9}, v{vF+10}
        v_max3_u32 v{vT1}, v{vT1}, v{vF+11}, v{vF+12}
        v_max3_u32 v{vT2}, v{vT2}, v{vF+13}, v{vF+14}
        v_max3_u32 v{vT0}, v{vT0}, v{vT1}, v{vF+15}
        v_max_u32 v{vT0}, v{vT0}, v{vT2}
        v_cmp_eq_u32 vcc, -1, v{vT0}
        s_cbranch_vccz {ok}
        """)

    def fb_finish(vF):
        for r in range(4):
            a(f"v_add_f32 v{vF+r}, v{vF+r}, v{vF+4+r}")
            a(f"v_add_f32 v{vF+8+r}, v{vF+8+r}, v{vF+12+r}")
        for r in range(4):
            a(f"v_add_f32 v{vF+r}, v{vF+r}, v{vF+8+r}")
        a(f"""
        s_nop 0
        v_permlane16_swap_b32 v{vF}, v{vF+1}
        v_permlane16_swap_b32 v{vF+2}, v{vF+3}
        v_add_f32 v{vF}, v{vF}, v{vF+1}
        v_add_f32 v{vF+2}, v{vF+2}, v{vF+3}
        s_nop 1
        v_permlane32_swap_b32 v{vF}, v{vF+2}
        v_add_f32 v{vF}, v{vF}, v{vF+2}
        s_nop 1
        v_add_f32_dpp v{vF}, v{vF}, v{vF} row_ror:4 {DPP}
        s_nop 1
        v_add_f32_dpp v{vF}, v{vF}, v{vF} row_ror:8 {DPP}
        v_cvt_pk_bf16_f32 v{vF}, v{vF}, v{vF}
        """)
        a.exec_pat(0x000F000F)
        a(f"buffer_store_short v{vF}, v21, s[{RO}:{RO+3}], s{sVAL2} offen")
    LF = a.lab("fb")
    oks = [a.lab("fbok") for _ in sets]
    LEP = a.lab("epoch")
    a(f"s_mov_b32 s{sCNT}, 0")
    if p.fin_pipe:
        fb_loads(sets[0])
        a(f"{LF}:")
        fb_loads(sets[1])
        a("s_waitcnt vmcnt(4)")
        fb_check(sets[0], oks[0])
        fb_loads(sets[0])
        a("s_waitcnt vmcnt(4)")
        fb_check(sets[1], oks[1])
        a(f"s_add_u32 s{sCNT}, s{sCNT}, 1")
        a(f"s_cmp_lt_u32 s{sCNT}, {SPIN_MEM}")
        a(f"s_cbranch_scc1 {LF}")
        a("s_waitcnt vmcnt(0)")
        a(f"{oks[0]}:")
        fb_finish(sets[0])
        a(f"s_branch {LEP}")
        a(f"{oks[1]}:")
        fb_finish(sets[1])
    else:
        a(f"{LF}:")
        fb_loads(sets[0])
        a("s_waitcnt vmcnt(0)")
        fb_check(sets[0], oks[0])
        a(f"s_add_u32 s{sCNT}, s{sCNT}, 1")
        a(f"s_cmp_lt_u32 s{sCNT}, {SPIN_MEM}")
        a(f"s_cbranch_scc1 {LF}")
        a(f"{oks[0]}:")
        fb_finish(sets[0])
    a(f"{LEP}:")
    a(f"""
    s_cmp_lg_u32 s{sB}, 0
    s_cbranch_scc1 L_fin
    s_mov_b64 exec, 1
    v_mov_b32 v{vT1}, s{sTAG}
    v_mov_b32 v{vT2}, 0
    buffer_store_dword v{vT1}, v{vT2}, s[{WS}:{WS+3}], 0 offen sc1
    """)
    a("L_fin:")
    if p.exp_stop:
        a("L_exp_exit:")
    a.exec_all()
    a.stamp(12)
    a("s_branch L_dump" if p.stamps else "s_endpgm")


def l_role(a, p):
    NT = " " + p.nt if p.nt else ""
    vKO, vVO, vTM, vFL, vONE = 2, 3, 4, 5, 6
    vU0, vU1, vU2 = 7, 8, 9
    vTR, vKG, vJ = 10, 14, 15
    vB, vAF, vACC = 16, 80, 112
    vPA, vHS, vSMA = 116, 124, 125
    vM4, vL4 = 128, 132
    if p.prio_l:
        a(f"s_setprio {p.prio_l}")
    a(f"""
    v_lshrrev_b32 v{vU0}, 5, v{vL}
    v_and_b32 v{vU1}, 31, v{vL}
    v_xor_b32 v{vU1}, v{vU1}, v{vU0}
    v_lshlrev_b32 v{vU1}, 4, v{vU1}
    v_lshlrev_b32 v{vU0}, 9, v{vU0}
    v_add_u32 v{vKO}, v{vU0}, v{vU1}
    v_lshrrev_b32 v{vU0}, 3, v{vL}
    v_and_b32 v{vU1}, 6, v{vU0}
    v_and_b32 v{vU2}, 7, v{vL}
    v_xor_b32 v{vU1}, v{vU1}, v{vU2}
    v_lshlrev_b32 v{vU1}, 4, v{vU1}
    v_lshlrev_b32 v{vU0}, 9, v{vU0}
    v_add_u32 v{vVO}, v{vU0}, v{vU1}
    v_mov_b32 v{vFL}, {FL}
    v_mov_b32 v{vONE}, 1
    """)
    a.rot(p.rotk, sROTK)
    a(f"s_and_b32 s{sROTK}, s{sROTK}, 14")
    a.rot(p.rotv, sROTV)
    a(f"""
    s_lshl_b32 s{sX0}, s{sG}, 25
    s_add_u32 s{sX0}, s{sX0}, {(65536-4096)*512}
    s_lshl_b32 s{sT0}, s{sC}, 16
    s_add_u32 s{sX0}, s{sX0}, s{sT0}
    s_lshl_b32 s{sT0}, s{sW}, 14
    s_add_u32 s{sT1}, s{sX0}, s{sT0}
    s_lshl_b32 s{sT2}, s{sW}, 7
    s_add_u32 s{sT3}, s{sX0}, s{sT2}
    s_add_u32 s{sX1}, s{sT0}, {KL}
    s_add_u32 s{sX2}, s{sT0}, {VL}
    s_waitcnt lgkmcnt(0)
    """)
    a.srd_off(RA, 6, 7, sT1, 16384)
    a(f"""
    s_add_u32 s{RB}, s8, s{sT3}
    s_addc_u32 s{RB+1}, s9, 0
    s_and_b32 s{RB+1}, s{RB+1}, 0xffff
    s_sub_u32 s{RB+2}, 65536, s{sT2}
    s_mov_b32 s{RB+3}, 0x20000
    s_barrier
    """)
    a.stamp(1)
    depthv = p.depthv or p.depth

    def dep(idx):
        if idx >= 16:
            return min(depthv, p.depth + (idx - 16) + 1)
        if p.ramp:
            return min(p.depth, p.ramp + max(0, idx - p.ramp + 1) // 2)
        return p.depth

    def k_landed():
        a("s_mov_b64 exec, 1")
        a(f"v_mov_b32 v{vU0}, s{sW}")
        a(f"v_lshlrev_b32 v{vU0}, 2, v{vU0}")
        a(f"v_add_u32 v{vU0}, v{vFL}, v{vU0}")
        a(f"ds_write_b32 v{vU0}, v{vONE} offset:{F_K}")
        a.exec_all()
        a.stamp(2)
    prev = -1
    setup_done = False
    for idx in range(32):
        i = idx & 15
        d = dep(idx)
        if idx >= d:
            if not setup_done:
                l_setup(a, p, vB, vKG, vJ, vTR, vU0, vU1, vU2, vTM, vACC, vPA, vHS, vSMA)
                setup_done = True
            a(f"s_waitcnt vmcnt({d-1})")
            done = idx - d
            for ev in range(prev + 1, done + 1):
                if p.trig and ev == p.trig - 1:
                    a.signal(vFL, F_H, vONE)
                if ev == 15:
                    k_landed()
            prev = max(prev, done)
        if idx < 16:
            a(f"s_add_u32 s{sT0}, s{sROTK}, {i}")
            a(f"s_and_b32 s{sT0}, s{sT0}, 15")
            a(f"s_lshl_b32 s{sT0}, s{sT0}, 10")
            a(f"s_add_u32 m0, s{sX1}, {1024*i}")
            x = ((2 * i) & 15) << 4
            if x:
                a(f"v_xor_b32 v{vTM}, {x}, v{vKO}")
                a(f"buffer_load_dwordx4 v{vTM}, s[{RA}:{RA+3}], s{sT0} offen{NT} lds")
            else:
                a("s_nop 0")
                a(f"buffer_load_dwordx4 v{vKO}, s[{RA}:{RA+3}], s{sT0} offen{NT} lds")
        else:
            a(f"s_add_u32 s{sT0}, s{sROTV}, {i}")
            a(f"s_and_b32 s{sT0}, s{sT0}, 15")
            a(f"s_add_u32 m0, s{sX2}, {1024*i}")
            a(f"s_lshl_b32 s{sT0}, s{sT0}, 12")
            a(f"buffer_load_dwordx4 v{vVO}, s[{RB}:{RB+3}], s{sT0} offen{NT} lds")
    if p.wo_at < 0:
        a.signal(vFL, F_V, vONE)
    a.stamp(3)
    if prev < 15:
        a("s_waitcnt vmcnt(16)")
        if p.trig and prev < p.trig - 1:
            a.signal(vFL, F_H, vONE)
        k_landed()
    if p.exp_stop not in (1, 2):
        a.spin_lds(vFL, F_P, 4, vTM)
    a.stamp(4)
    a(f"ds_read_b32 v136, v{vFL} offset:{F_M}")
    a(f"ds_read_b128 v[{vM4}:{vM4+3}], v{vSMA}")
    a(f"ds_read_b128 v[{vL4}:{vL4+3}], v{vSMA} offset:{SS-SM}")
    for t in range(4):
        a.exec_pat((3 << (2 * t)) * 0x00010001)
        for k in range(8):
            r = vB + 16 * t + 2 * k
            a(f"ds_read_b64 v[{r}:{r+1}], v{vPA+k}")
        if t == 0:
            a.exec_all()
            a("s_waitcnt lgkmcnt(8)")
            a(f"v_readfirstlane_b32 s{sMODE}, v136" if not p.exp_stop else f"s_mov_b32 s{sMODE}, 0")
            a(f"v_max3_f32 v{vM4}, v{vM4}, v{vM4+1}, v{vM4+2}")
            a(f"v_add_f32 v{vL4}, v{vL4}, v{vL4+1}")
            a(f"v_max_f32 v{vM4}, v{vM4}, v{vM4+3}")
            a(f"v_add_f32 v{vL4+2}, v{vL4+2}, v{vL4+3}")
            a(f"s_mov_b32 s{sT2}, {SCALE_LOG2E:#x}")
            a(f"v_mul_f32 v{vM4}, s{sT2}, v{vM4}")
            a(f"v_add_f32 v{vL4}, v{vL4}, v{vL4+2}")
            a.exec_pat(0xFF00FF00)
            a(f"v_mov_b32 v{vACC}, v{vM4}")
            a(f"v_mov_b32 v{vACC+1}, v{vL4}")
    a.exec_all()
    a.stamp(5)
    for J in range(4):
        a(f"s_waitcnt vmcnt({12-4*J})")
        if J == p.wo_at:
            a.signal(vFL, F_V, vONE)
        if J == 3:
            a.stamp(6)
        s = vAF + 16 * (J & 1)
        for t in range(4):
            for hf in range(2):
                r = s + 4 * t + 2 * hf
                a(f"ds_read_b64_tr_b16 v[{r}:{r+1}], v{vTR+t} offset:{1024*(4*J+2*hf)}")
        for t in range(4):
            a(f"s_waitcnt lgkmcnt({6-2*t})")
            a(f"v_mfma_f32_16x16x32_bf16 v[{vACC}:{vACC+3}], v[{s+4*t}:{s+4*t+3}], v[{vB+16*t+4*J}:{vB+16*t+4*J+3}], v[{vACC}:{vACC+3}]")
    LSS, LSD = a.lab("slowst"), a.lab("std")
    a(f"s_cmp_lg_u32 s{sMODE}, 0")
    a(f"s_cbranch_scc1 {LSS}")
    a("s_nop 5")
    a(f"buffer_store_dwordx4 v[{vACC}:{vACC+3}], v{vHS}, s[{WS}:{WS+3}], s{sX3} offen")
    a(f"{LSD}:")
    a.signal(vFL, F_D, vONE)
    a.stamp(7)
    if not p.exp_stop:
        a("s_barrier")
        a("s_barrier")
    a("s_branch L_dump" if p.stamps else "s_endpgm")
    a(f"{LSS}:")
    a.spin_lds(vFL, F_B, 1, vTM)
    a(f"s_add_u32 s{sX3}, s{sX3}, {WS_HA2-WS_HA}")
    a(f"buffer_store_dwordx4 v[{vACC}:{vACC+3}], v{vHS}, s[{WS}:{WS+3}], s{sX3} offen sc1")
    a(f"s_branch {LSD}")


def l_setup(a, p, vB, vKG, vJ, vTR, vU0, vU1, vU2, vTM, vACC, vPA, vHS, vSMA):
    for r in range(64):
        a(f"v_mov_b32 v{vB+r}, 0")
    for r in range(4):
        a(f"v_mov_b32 v{vACC+r}, 0")
    a(f"v_lshrrev_b32 v{vKG}, 4, v{vL}")
    a(f"v_and_b32 v{vJ}, 15, v{vL}")
    a.tr_addrs(vTR, f"s{sX2}", vU0, vU1, vU2)
    a.srd(WS, 18, 19, WS_SIZE)
    a(f"""
    v_and_b32 v{vU0}, 1, v{vJ}
    v_lshlrev_b32 v{vU0}, 4, v{vU0}
    v_bfe_u32 v{vU1}, v{vJ}, 1, 2
    v_add_u32 v{vU0}, v{vU0}, v{vU1}
    v_lshlrev_b32 v{vU0}, 12, v{vU0}
    v_lshrrev_b32 v{vU1}, 3, v{vJ}
    v_lshlrev_b32 v{vU1}, 2, v{vU1}
    v_add_u32 v{vU1}, v{vU1}, v{vKG}
    v_lshlrev_b32 v{vU1}, 4, v{vU1}
    v_add_u32 v{vHS}, v{vU0}, v{vU1}
    s_lshl_b32 s{sX3}, s{sG}, 17
    s_lshl_b32 s{sT0}, s{sW}, 14
    s_add_u32 s{sX3}, s{sX3}, s{sT0}
    s_lshl_b32 s{sT0}, s{sC}, 7
    s_add_u32 s{sX3}, s{sX3}, s{sT0}
    s_add_u32 s{sX3}, s{sX3}, {WS_HA}
    """)
    a(f"""
    v_lshrrev_b32 v{vU0}, 1, v{vKG}
    v_add_u32 v{vU0}, s{sROTV}, v{vU0}
    v_and_b32 v{vU1}, 1, v{vKG}
    v_lshlrev_b32 v{vU1}, 3, v{vU1}
    v_and_b32 v{vU2}, 1, v{vJ}
    v_lshlrev_b32 v{vTM}, 8, v{vU2}
    v_add_u32 v{vU1}, v{vU1}, v{vTM}
    v_add_u32 v{vU1}, {PL}, v{vU1}
    v_lshlrev_b32 v{vU2}, 4, v{vU2}
    v_add_u32 v{vSMA}, {SM}, v{vU2}
    """)
    for k in range(8):
        a(f"v_add_u32 v{vTM}, {2*k}, v{vU0}")
        a(f"v_and_b32 v{vTM}, 15, v{vTM}")
        a(f"v_lshlrev_b32 v{vTM}, 4, v{vTM}")
        a(f"v_add_u32 v{vPA+k}, v{vTM}, v{vU1}")


def gen(p):
    a = G(p.stamps)
    a(f"""
    s_cmp_ge_u32 s{sB}, 256
    s_cbranch_scc1 L_end
    s_load_dwordx16 s[4:19], s[0:1], 0
    """)
    a.stamp(0)
    if p.stamps:
        for r in range(66, 96):
            a(f"s_mov_b32 s{r}, 0")
    a(f"""
    v_lshrrev_b32 v2, 6, v0
    v_and_b32 v{vL}, 63, v0
    v_readfirstlane_b32 s{sWAVE}, v2
    {"s_lshr_b32 s%d, s%d, 5" % (sG, sB) if p.swapmap else "s_and_b32 s%d, s%d, 7" % (sG, sB)}
    {"s_and_b32 s%d, s%d, 31" % (sC, sB) if p.swapmap else "s_lshr_b32 s%d, s%d, 3" % (sC, sB)}
    s_and_b32 s{sW}, s{sWAVE}, 3
    s_cmp_ge_u32 s{sWAVE}, 4
    s_cbranch_scc1 L_loader
    """)
    s_role(a, p)
    a("L_loader:")
    l_role(a, p)
    if p.stamps:
        a("L_dump:")
        from stamps import dump
        a("s_waitcnt lgkmcnt(0)")
        if p.dbgwg is None:
            a.srd(WS, 18, 19, 0x40000000)
            dump(a, 16, 8, wave_sreg=f"s{sWAVE}", wg_sreg=f"s{sB}", ws_srd=WS, vt=(200,))
        else:
            a(f"s_cmp_lg_u32 s{sB}, {p.dbgwg}")
            a("s_cbranch_scc1 L_end")
            a.srd(WS, 16, 17, 256)
            a("s_mov_b64 exec, 1")
            a("v_mov_b32 v200, 0")
            a(f"s_cmp_eq_u32 s{sWAVE}, 4")
            a("s_cbranch_scc1 L_dbg_l")
            a(f"s_cmp_lg_u32 s{sWAVE}, 0")
            a("s_cbranch_scc1 L_end")
            for n, k in enumerate((13, 2, 3, 4, 5, 6, 7, 8, 9, 15, 10, 11)):
                a(f"s_sub_u32 s62, s{64+2*k}, s64")
                a("v_mov_b32 v204, s62")
                a(f"buffer_store_dword v204, v200, s[{WS}:{WS+3}], 0 offen offset:{4*n}")
            a("s_branch L_end")
            a("L_dbg_l:")
            for n, k in enumerate((2, 3, 6, 7)):
                a(f"s_sub_u32 s62, s{64+2*k}, s64")
                a("v_mov_b32 v204, s62")
                a(f"buffer_store_dword v204, v200, s[{WS}:{WS+3}], 0 offen offset:{48+4*n}")
    a("L_end:")
    a("s_endpgm")
    return wrap(a.text(), 256, 512, LDS_BYTES, vgpr=216 if p.stamps else 160, sgpr=102)


if __name__ == "__main__":
    import argparse
    ap = argparse.ArgumentParser()
    ap.add_argument("-o", default="k.s")
    for k in [k for k in dir(P) if not k.startswith("_")]:
        v = getattr(P, k)
        if isinstance(v, bool):
            ap.add_argument("--" + k, type=lambda x: x not in ("0", "False"), default=v, nargs="?", const=True)
        elif isinstance(v, int) or v is None:
            ap.add_argument("--" + k, type=int, default=v)
        else:
            ap.add_argument("--" + k, default=v)
    args = ap.parse_args()
    p = P()
    for k in vars(args):
        setattr(p, k, getattr(args, k))
    open(args.o, "w").write(gen(p))
```
